```python
import torch

def _softmax(x, axis=-1):
    return torch.softmax(x, dim=axis)
def _gelu(x):
    return torch.nn.functional.gelu(x, approximate="tanh")
def _silu(x):
    return torch.nn.functional.silu(x)
def _sigmoid(x):
    return torch.sigmoid(x)
def _layernorm(x, axis=-1, eps=1e-5):
    m = x.mean(dim=axis, keepdim=True)
    v = x.var(dim=axis, keepdim=True, unbiased=False)
    return (x - m) / torch.sqrt(v + eps)
def _scatter_add(tgt, idx, src, axis=0):
    return tgt.clone().index_add_(axis, idx, src)
def _segment_sum(src, seg, n):
    out = torch.zeros((n,) + src.shape[1:], dtype=src.dtype)
    return out.index_add_(0, seg, src)
def _pad(x, pw):
    flat = tuple(v for pair in reversed(pw) for v in pair)
    return torch.nn.functional.pad(x, flat)

kernel_name = 'sequential_preLN__grouped_kv_mqa__mixer_token_mlp__prompt'

def setup_inputs():

    _w = (lambda a: (lambda t: t.to(torch.bfloat16) if t.is_floating_point() else t)(torch.as_tensor(a)))
    def _A_setup():
        B, S, D, H = 1, 2048, 640, 32
        Dh = D // H
        return {
            "x": _w((lambda *s: torch.randn(*s, dtype=torch.bfloat16) * 0.05)(B, S, D)),
            "wq": _w((lambda *s: torch.randn(*s, dtype=torch.bfloat16) * 0.05)(D, H * Dh)),
            "wk": _w((lambda *s: torch.randn(*s, dtype=torch.bfloat16) * 0.05)(D, Dh)),
            "wv": _w((lambda *s: torch.randn(*s, dtype=torch.bfloat16) * 0.05)(D, Dh)),
            "wo": _w((lambda *s: torch.randn(*s, dtype=torch.bfloat16) * 0.05)(H * Dh, D)),
        }
    _A_in = _A_setup()

    def _B_setup():
        B, S, D, F = 1, 2048, 640, 1536
        return {
            "x": _w((lambda *s: torch.randn(*s, dtype=torch.bfloat16) * 0.05)(B, S, D)),
            "w1": _w((lambda *s: torch.randn(*s, dtype=torch.bfloat16) * 1.6)(S, F) * (S ** -0.5)),
            "b1": _w((lambda *s: torch.randn(*s, dtype=torch.bfloat16) * 1.6)(F) * 0.02),
            "w2": _w((lambda *s: torch.randn(*s, dtype=torch.bfloat16) * 1.6)(F, S) * (F ** -0.5)),
            "b2": _w((lambda *s: torch.randn(*s, dtype=torch.bfloat16) * 0.8)(S) * 0.02),
        }
    _B_in = _B_setup()

    return {
        "A_x": _A_in["x"],
        "A_wq": _A_in["wq"],
        "A_wk": _A_in["wk"],
        "A_wv": _A_in["wv"],
        "A_wo": _A_in["wo"],
        "B_x": _B_in["x"],
        "B_w1": _B_in["w1"],
        "B_b1": _B_in["b1"],
        "B_w2": _B_in["w2"],
        "B_b2": _B_in["b2"],
    }

def reference(A_x, A_wq, A_wk, A_wv, A_wo, B_x, B_w1, B_b1, B_w2, B_b2):
    def _A_ref(x, wq, wk, wv, wo):
        B, S, D = x.shape
        H = 32
        Dh = D // H
        q = (lambda x, *d: x.permute(*d))((x @ wq).reshape(B, S, H, Dh), 0, 2, 1, 3)
        k = x @ wk
        v = x @ wv
        scores = torch.einsum("bhqd,bkd->bhqk", q, k) * (Dh ** -0.5)
        p = _softmax(scores, axis=-1)
        o = torch.einsum("bhqk,bkd->bhqd", p, v)
        return (lambda x, *d: x.permute(*d))(o, 0, 2, 1, 3).reshape(B, S, H * Dh) @ wo

    def _B_ref(x, w1, b1, w2, b2):
        B, S, D = x.shape
        h = _layernorm(x, axis=-1)
        u = torch.einsum("bsd,sf->bdf", h, w1) + b1
        u = _gelu(u)
        y = torch.einsum("bdf,fs->bds", u, w2) + b2
        return (lambda x, *d: x.permute(*d))(y, 0, 2, 1)

    x = A_x
    h = x + _A_ref(_layernorm(x, axis=-1), A_wq, A_wk, A_wv, A_wo)
    h2 = h + _B_ref(_layernorm(h, axis=-1), B_w1, B_b1, B_w2, B_b2)
    return h2
```

```python
import re

REG_RE = re.compile(r'^(-?)(?:abs\()?([vas])(?:(\d+)|\[(\d+):(\d+)\])\)?$')

def regs_of(tok):
    tok = tok.strip()
    m = REG_RE.match(tok)
    if m:
        k = m.group(2)
        if m.group(3) is not None:
            return [(k, int(m.group(3)))]
        return [(k, i) for i in range(int(m.group(4)), int(m.group(5)) + 1)]
    if tok == 'vcc': return [('s', 'vcc')]
    if tok in ('vcc_lo', 'vcc_hi'): return [('s', 'vcc')]
    if tok in ('exec', 'exec_lo', 'exec_hi'): return [('s', 'exec')]
    if tok == 'm0': return [('s', 'm0')]
    return []

def vr(base, n=1, k='v'):
    return f"{k}{base}" if n == 1 else f"{k}[{base}:{base+n-1}]"
def ar(base, n=1): return vr(base, n, 'a')
def sr(base, n=1): return vr(base, n, 's')

TRANS = ('v_exp_f32', 'v_log_f32', 'v_rcp_f32', 'v_rsq_f32', 'v_sqrt_f32', 'v_sin_f32', 'v_cos_f32')

def passes(op):
    if '32x32x4_2b' in op: return 16
    if '32x32x' in op: return 8
    if '16x16x' in op: return 4
    raise ValueError(op)

class Ins:
    __slots__ = ('text', 'op', 'kind', 'w', 'r', 'srcc', 'ab', 'dpp', 'data')
    def __init__(self, text):
        self.text = text
        t = text.split(';')[0].strip()
        parts = t.split(None, 1)
        self.op = op = parts[0]
        rest = parts[1] if len(parts) > 1 else ''
        toks = []
        for c in rest.split(','):
            c = c.strip()
            if not c: continue
            toks.append(c.split()[0])
        mods = rest
        self.w = []; self.r = []; self.srcc = []; self.ab = []; self.data = []
        self.dpp = ('quad_perm' in mods or 'row_' in mods or 'wave_' in mods)
        R = lambda i: regs_of(toks[i]) if i < len(toks) else []
        if op.startswith('v_mfma'):
            self.kind = 'mfma'; self.w = R(0); self.ab = R(1) + R(2); self.srcc = R(3); self.r = self.ab + self.srcc
        elif op.startswith('v_smfmac'):
            self.kind = 'mfma'; self.w = R(0); self.ab = R(1) + R(2) + R(3); self.srcc = R(0); self.r = self.ab + self.srcc
        elif op.startswith('v_'):
            self.kind = 'valu'
            self.w = R(0)
            for i in range(1, len(toks)): self.r += R(i)
            if op.startswith('v_permlane'):
                self.w = R(0) + R(1); self.r = R(0) + R(1)
            if op.startswith(('v_fmac', 'v_dot2c', 'v_writelane', 'v_pk_fmac')) or self.dpp or 'UNUSED_PRESERVE' in mods:
                self.r += R(0)
            if op.startswith(('v_add_co', 'v_sub_co', 'v_addc_co', 'v_subb_co')):
                self.w = R(0) + R(1); self.r = []
                for i in range(2, len(toks)): self.r += R(i)
            if op.startswith('v_cmpx'): self.w += [('s', 'exec')]
        elif op.startswith(('buffer_load', 'global_load')):
            self.kind = 'vmem'
            if re.search(r'\blds\b', mods) or '_lds_' in op:
                for i in range(len(toks)): self.r += R(i)
                self.r += [('s', 'm0')]
            else:
                self.w = R(0)
                for i in range(1, len(toks)): self.r += R(i)
        elif op.startswith(('buffer_store', 'global_store', 'buffer_atomic', 'global_atomic')):
            self.kind = 'vmem'
            for i in range(len(toks)): self.r += R(i)
            if op.endswith(('x3', 'x4')):
                self.data = R(0) if op.startswith('buffer') else R(1)
        elif op.startswith(('buffer_inv', 'buffer_wbl2')):
            self.kind = 'vmem'
        elif op.startswith('ds_'):
            self.kind = 'ds'
            if op.startswith(('ds_read', 'ds_bpermute', 'ds_permute', 'ds_swizzle')):
                self.w = R(0)
                for i in range(1, len(toks)): self.r += R(i)
            else:
                for i in range(len(toks)): self.r += R(i)
        elif op.startswith(('s_load', 's_memtime', 's_memrealtime', 's_buffer_load')):
            self.kind = 'smem'; self.w = R(0)
            for i in range(1, len(toks)): self.r += R(i)
        elif op in ('s_nop', 's_waitcnt', 's_barrier', 's_endpgm', 's_setprio', 's_sleep') or op.startswith(('s_branch', 's_cbranch')):
            self.kind = 'ctl'
        elif op.startswith('s_'):
            self.kind = 'salu'
            if op.startswith(('s_cmp', 's_bitcmp')):
                for i in range(len(toks)): self.r += R(i)
            else:
                self.w = R(0)
                for i in range(1, len(toks)): self.r += R(i)
                if 'saveexec' in op: self.w += [('s', 'exec')]
        else:
            raise ValueError("unknown op: " + text)

WS_D_USE = {4: 8, 8: 12, 16: 20}
WS_D_C_OVL = {4: 6, 8: 10, 16: 18}
WS_C_WAR = {4: 3, 8: 7, 16: 15}

class Prog:
    def __init__(self):
        self.lines = []
        self.hist = []
        self.vm_seq = 0; self.vm_done = 0
        self.lg_seq = 0; self.lg_done = 0
        self.pend = {}
        self.smem_out = False
        self.nops = []
        self.tag = ''
        self.ninstr = 0

    def raw(self, s): self.lines.append(s)
    def comment(self, s): self.lines.append('    ; ' + s)
    def _put(self, text, states=1, ins=None):
        self.lines.append('    ' + text)
        self.hist.append((ins or Ins(text), states))
        self.ninstr += 1
        if len(self.hist) > 40: self.hist.pop(0)

    def wait_vm(self, tok):
        if tok is None or tok <= self.vm_done: return
        n = min(self.vm_seq - tok, 63)
        self._put(f"s_waitcnt vmcnt({n})")
        self.vm_done = self.vm_seq - n
    def wait_lg(self, tok):
        if tok is None or tok <= self.lg_done: return
        n = 0 if self.smem_out else min(self.lg_seq - tok, 15)
        self._put(f"s_waitcnt lgkmcnt({n})")
        self.lg_done = self.lg_seq - n
        if n == 0: self.smem_out = False
    def wait_all(self, vm=True, lg=True):
        if vm and lg:
            self._put("s_waitcnt vmcnt(0) lgkmcnt(0)")
        elif vm: self._put("s_waitcnt vmcnt(0)")
        elif lg: self._put("s_waitcnt lgkmcnt(0)")
        if vm: self.vm_done = self.vm_seq
        if lg: self.lg_done = self.lg_seq; self.smem_out = False
    def barrier(self, lg=True):
        if lg: self.wait_lg(self.lg_seq)
        self._put("s_barrier")
    def fence(self, n=20):
        self.wait_all()
        while n > 0:
            k = min(n, 16); self._put(f"s_nop {k-1}", k); n -= k
    def label(self, name):
        self.lines.append(name + ':')

    def need_states(self, ins):
        need = 0; dist = 0
        rs = set(ins.r); ws = set(ins.w)
        for prev, st in reversed(self.hist):
            pw = set(prev.w)
            req = 0
            if prev.kind == 'valu':
                vw = {x for x in pw if x[0] in 'va'}
                sw = {x for x in pw if x[0] == 's'}
                if ins.kind == 'mfma':
                    if vw & rs: req = max(req, 2)
                    if ('s', 'exec') in sw: req = max(req, 4)
                if ins.kind == 'valu':
                    if prev.op.startswith(TRANS) and (vw & rs): req = max(req, 1)
                    if ins.dpp and (vw & rs): req = max(req, 2)
                    if ins.dpp and ('s', 'exec') in sw: req = max(req, 5)
                    if ins.op.startswith('v_permlane') and (vw & rs): req = max(req, 2)
                    if ins.op.startswith(('v_readlane', 'v_readfirstlane')) and (vw & rs): req = max(req, 1)
                    if sw & rs: req = max(req, 4 if ins.op.startswith(('v_readlane', 'v_writelane')) else 2)
                    if ('sdwa' in prev.op or 'op_sel' in prev.text) and not prev.op.startswith('v_pk') and (vw & (rs | ws)): req = max(req, 1)
                    if prev.op.startswith('v_dot2') and (vw & (rs | ws)):
                        same = ins.op == prev.op and not (vw & set(ins.r[:-1] if ins.op.startswith('v_dot2c') else ins.r[:2]))
                        if not same: req = max(req, 3)
                if ins.kind in ('vmem', 'ds', 'mfma') and prev.op.startswith('v_dot2') and (vw & rs): req = max(req, 3)
                if ins.kind == 'vmem' and (sw & rs): req = max(req, 5)
                if ins.kind in ('salu', 'smem') and (sw & rs): req = max(req, 1)
            elif prev.kind == 'mfma':
                P = passes(prev.op)
                if ins.kind == 'mfma':
                    if pw & set(ins.ab): req = max(req, WS_D_USE[P])
                    cset = set(ins.srcc) | ws
                    if pw & cset:
                        exact = (prev.w == ins.srcc) and passes(ins.op) == P
                        if not exact: req = max(req, WS_D_C_OVL[P])
                elif ins.kind in ('valu', 'vmem', 'ds'):
                    if pw & (rs | ws): req = max(req, WS_D_USE[P])
                    if set(prev.srcc) & ws: req = max(req, WS_C_WAR[P])
            elif prev.kind == 'salu':
                if ('s', 'm0') in pw and ('s', 'm0') in rs and ins.kind in ('vmem', 'ds'): req = max(req, 1)
            elif prev.kind == 'vmem':
                if prev.data and (set(prev.data) & ws): req = max(req, 2)
            need = max(need, req - dist)
            dist += st
            if dist > 24: break
        return need

    def e(self, text):
        ins = Ins(text)
        vm = lg = None
        for x in set(ins.r) | set(ins.w):
            p = self.pend.get(x)
            if p:
                if p[0] == 'vm' and p[1] > self.vm_done: vm = max(vm or 0, p[1])
                if p[0] == 'lg' and p[1] > self.lg_done: lg = max(lg or 0, p[1])
        self.wait_vm(vm); self.wait_lg(lg)
        n = self.need_states(ins)
        if n > 0:
            self.nops.append((self.tag, n, text))
            while n > 0:
                k = min(n, 16); self._put(f"s_nop {k-1}", k); n -= k
        st = 1
        if ins.op == 's_nop': st = int(text.split()[1]) + 1
        self._put(text, st, ins)
        if ins.kind == 'vmem':
            self.vm_seq += 1
            for x in ins.w: self.pend[x] = ('vm', self.vm_seq)
            return self.vm_seq
        if ins.kind in ('ds', 'smem'):
            self.lg_seq += 1
            if ins.kind == 'smem': self.smem_out = True
            for x in ins.w: self.pend[x] = ('lg', self.lg_seq)
            return self.lg_seq
        return None

    def em(self, *texts):
        for t in texts:
            for l in t.strip().split('\n'):
                l = l.strip()
                if l: self.e(l)

    def text(self): return '\n'.join(self.lines) + '\n'
```

```python
from asmlib import *
S, D, H, DH, F = 2048, 640, 32, 20, 1536
QF  = 0
KFM = QF + 256*8*1280
KFE = KFM + 65536
VF  = KFE + 16384
WF  = VF + 128*768
HTP = WF + 819200
HT  = HTP + 20*256*512
GF  = HT + 20*256*512
WS_END = GF + 40*48*1024
LOG2E = 1.4426950408889634
QSCALE = DH ** -0.5 * LOG2E
EPS = 1e-5
import struct
def f32(x): return "0x%08x" % struct.unpack('<I', struct.pack('<f', x))[0]
def srd(p, d, base, nbytes, off=0):
    if off:
        p.e(f"s_add_u32 s{d}, s{base}, {off}")
        p.e(f"s_addc_u32 s{d+1}, s{base+1}, 0")
    else:
        p.e(f"s_mov_b32 s{d}, s{base}")
        p.e(f"s_mov_b32 s{d+1}, s{base+1}")
    p.e(f"s_mov_b32 s{d+2}, {nbytes}")
    p.e(f"s_mov_b32 s{d+3}, 0x20000")
def kernel_head(name):
    return f".globl {name}\n.p2align 8\n.type {name},@function\n{name}:\n"
def kernel_desc(name, nv, acc):
    return f""".amdhsa_kernel {name}
  .amdhsa_next_free_vgpr {nv}
  .amdhsa_next_free_sgpr 96
  .amdhsa_accum_offset {acc}
  .amdhsa_group_segment_fixed_size 0
  .amdhsa_kernarg_size 104
  .amdhsa_user_sgpr_count 2
  .amdhsa_user_sgpr_kernarg_segment_ptr 1
  .amdhsa_system_sgpr_workgroup_id_x 1
.end_amdhsa_kernel
"""
assert all((u*205) >> 11 == u//10 for u in range(1024))
assert all((u*205) >> 12 == u//20 for u in range(1024))
if __name__ == "__main__":
    for n in "QF KFM KFE VF WF HTP HT GF WS_END".split(): print(n, globals()[n], hex(globals()[n]))
```

```python
from common import *
L_KV = 0; L_WO = 10240; L_ONES = 14336; L_CS = 14848
L_SLOT = 16384; SLOT = 36864
K1_LDS = L_SLOT + 4*SLOT
assert K1_LDS <= 163840

def gen_k1(p, end_label):
    p.tag = 'k1'
    e = p.e
    e("s_cmp_ge_u32 s2, 256")
    e(f"s_cbranch_scc1 {end_label}")
    e("s_load_dwordx8 s[4:11], s[0:1], 0")
    e("s_load_dwordx2 s[12:13], s[0:1], 32")
    e("s_load_dwordx2 s[14:15], s[0:1], 96")
    sW, sRB, sCB = 40, 41, 42
    e("v_lshrrev_b32 v1, 6, v0")
    e("v_and_b32 v0, 63, v0")
    e(f"v_readfirstlane_b32 s{sW}, v1")
    e("s_and_b32 s3, s2, 7")
    e("s_lshr_b32 s43, s2, 3")
    e("s_lshr_b32 s44, s3, 1")
    e("s_lshl_b32 s44, s44, 3")
    e("s_and_b32 s45, s43, 7")
    e(f"s_add_u32 s{sRB}, s44, s45")
    e("s_and_b32 s44, s3, 1")
    e("s_lshl_b32 s44, s44, 2")
    e("s_lshr_b32 s45, s43, 3")
    e(f"s_add_u32 s{sCB}, s44, s45")
    vXS, vKVS, vWOS = 2, 3, 4
    vWS = [5, 6, 7, 8, 9]
    e("v_lshrrev_b32 v10, 2, v0")
    e("v_lshrrev_b32 v11, 5, v0")
    e("v_lshlrev_b32 v11, 1, v11")
    e("v_xor_b32 v11, v11, v0")
    e("v_and_b32 v11, 3, v11")
    e("v_lshlrev_b32 v11, 4, v11")
    e(f"s_lshl_b32 s44, s{sRB}, 2")
    e(f"s_add_u32 s44, s44, s{sW}")
    e("s_mul_i32 s45, s44, 20480")
    e("v_mul_u32_u24 v10, 1280, v10")
    e(f"v_add3_u32 v{vXS}, v10, v11, s45")
    sK = [46, 47, 48, 49]
    for i in range(4):
        e(f"s_add_u32 s{sK[i]}, s{sW}, {i}")
        e(f"s_and_b32 s{sK[i]}, s{sK[i]}, 3")
        e(f"s_lshl_b32 s{sK[i]}, s{sK[i]}, 6")
    def klocal(dst, rho, t):
        e(f"v_bfe_u32 v{t}, v{rho}, 2, 2")
        e(f"v_and_b32 v{dst}, 3, v{rho}")
        e(f"v_lshl_add_u32 v{dst}, v{t}, 3, v{dst}")
        e(f"v_bfe_u32 v{t}, v{rho}, 4, 1")
        e(f"v_lshl_add_u32 v{dst}, v{t}, 2, v{dst}")
    e(f"s_mul_i32 s45, s{sW}, {32*1280}")
    e(f"s_mul_i32 s50, s{sCB}, 160")
    e("s_add_u32 s45, s45, s50")
    for q in range(5):
        e(f"v_add_u32 v10, {64*q}, v0")
        e("v_mul_u32_u24 v11, 205, v10")
        e("v_lshrrev_b32 v11, 11, v11")
        e("v_mul_u32_u24 v12, 10, v11")
        e("v_sub_u32 v10, v10, v12")
        klocal(12, 11, 13)
        e("v_mul_u32_u24 v12, 1280, v12")
        e("v_lshl_add_u32 v12, v10, 4, v12")
        e(f"v_add_u32 v{vWS[q]}, s45, v12")
    sPair = 51
    e(f"s_cmp_ge_u32 s{sCB}, 3")
    e("s_cselect_b32 s50, 3, 0")
    e(f"s_sub_u32 s{sPair}, s{sCB}, s50")
    klocal(12, 0, 13)
    e("v_mul_u32_u24 v12, 40, v12")
    e(f"s_mul_i32 s45, s{sW}, {32*40}")
    e(f"s_lshl_b32 s50, s{sPair}, 4")
    e("s_add_u32 s45, s45, s50")
    e(f"v_add_u32 v{vKVS}, s45, v12")
    sK32, sCG = 52, 53
    e("s_mul_i32 s50, s2, 205")
    e(f"s_lshr_b32 s{sK32}, s50, 11")
    e(f"s_mul_i32 s50, s{sK32}, 10")
    e(f"s_sub_u32 s{sCG}, s2, s50")
    e(f"s_lshl_b32 s50, s{sK32}, 2")
    e(f"s_add_u32 s50, s50, s{sW}")
    e(f"s_mul_i32 s50, s50, {8*1280}")
    e(f"s_lshl_b32 s45, s{sCG}, 7")
    e("s_add_u32 s45, s45, s50")
    e("v_lshrrev_b32 v10, 3, v0")
    e("v_mul_u32_u24 v10, 1280, v10")
    e("v_and_b32 v11, 7, v0")
    e("v_lshlrev_b32 v11, 4, v11")
    e(f"v_add3_u32 v{vWOS}, v10, v11, s45")
    sXb, sWb, sKVb, sWOb = 54, 55, 56, 57
    e(f"s_lshl_b32 s{sXb}, s{sW}, 12")
    e(f"s_mul_i32 s{sWb}, s{sW}, 5120")
    e(f"s_lshl_b32 s{sKVb}, s{sW}, 9")
    e(f"s_lshl_b32 s{sWOb}, s{sW}, 10")
    srd(p, 16, 4, S*D*2)
    srd(p, 20, 6, D*D*2)
    e(f"s_cmp_ge_u32 s{sCB}, 3")
    e("s_cselect_b32 s24, s10, s8")
    e("s_cselect_b32 s25, s11, s9")
    e(f"s_mov_b32 s26, {D*DH*2}")
    e("s_mov_b32 s27, 0x20000")
    srd(p, 28, 12, D*D*2)
    toks = {}
    def issue_chunk(ch):
        sl = L_SLOT + (ch % 4)*SLOT
        e(f"s_mov_b32 s58, {ch*128*1280}")
        e(f"s_mov_b32 s59, {ch*128*40}")
        for q in range(5):
            if q < 4:
                e(f"s_add_u32 m0, s{sXb}, {sl + q*1024 - ch*256}")
                e(f"buffer_load_dwordx4 v{vXS}, s[16:19], s{sK[q]} offen offset:{ch*256} lds")
            e(f"s_add_u32 m0, s{sWb}, {sl + 16384 + q*1024}")
            e(f"buffer_load_dwordx4 v{vWS[q]}, s[20:23], s58 offen lds")
        e(f"s_add_u32 m0, s{sKVb}, {L_KV + ch*2048}")
        e("s_mov_b32 exec_hi, 0")
        toks[ch] = e(f"buffer_load_dwordx4 v{vKVS}, s[24:27], s59 offen lds")
        e("s_mov_b32 exec_hi, -1")
    issue_chunk(0)
    e(f"s_add_u32 m0, s{sWOb}, {L_WO}")
    e(f"buffer_load_dwordx4 v{vWOS}, s[28:31], 0 offen lds")
    issue_chunk(1); issue_chunk(2); issue_chunk(3)
    srd(p, 32, 14, WF)
    srd(p, 36, 14, 819200, WF)
    vWR = [10, 11, 12, 13]; vKR = [14, 15, 16, 17]; vXR = 18; vKinc = 19
    for i in range(4):
        e(f"s_mul_i32 s50, s{sK[i]}, 80")
        e(f"s_add_u32 s50, s50, {L_SLOT + 16384}")
        e(f"v_mad_u32_u24 v{vWR[i]}, v0, 40, s50")
    e("v_lshrrev_b32 v20, 2, v0")
    e("v_lshlrev_b32 v20, 4, v20")
    e("v_and_b32 v21, 1, v0")
    e("v_lshl_add_u32 v20, v21, 3, v20")
    e("v_and_b32 v21, 2, v0")
    e("v_cmp_eq_u32 vcc, 0, v21")
    e(f"v_mov_b32 v22, {L_ONES}")
    for i in range(4):
        e(f"s_lshl_b32 s50, s{sK[i]}, 3")
        e(f"v_add_u32 v21, s50, v20")
        e(f"v_cndmask_b32 v{vKR[i]}, v22, v21, vcc")
    e("v_mov_b32 v21, 2048")
    e(f"v_cndmask_b32 v{vKinc}, 0, v21, vcc")
    e("v_and_b32 v20, 15, v0")
    e("v_lshrrev_b32 v21, 3, v20")
    e("v_lshlrev_b32 v21, 1, v21")
    e("v_lshrrev_b32 v22, 4, v0")
    e("v_xor_b32 v21, v21, v22")
    e("v_lshlrev_b32 v21, 4, v21")
    e("v_lshl_add_u32 v20, v20, 6, v21")
    e(f"s_add_u32 s50, s{sXb}, {L_SLOT}")
    e(f"v_add_u32 v{vXR}, s50, v20")
    ACC = 32; CSA = 56; SQ = 60; SEL = 64; FA = [96, 128]
    e("v_mov_b32 v20, 0x3f803f80")
    e("v_mov_b32 v21, 0x3f803f80")
    e(f"v_mov_b32 v22, {L_ONES}")
    e("ds_write_b64 v22, v[20:21]")
    e("ds_write_b64 v22, v[20:21] offset:256")
    e("v_and_b32 v23, 15, v0")
    for t in range(6):
        e(f"v_cmp_eq_u32 vcc, {t}, v23")
        e(f"v_cndmask_b32 v{SEL+4*t}, 0, v20, vcc")
        for r in range(1, 4): e(f"v_mov_b32 v{SEL+4*t+r}, v{SEL+4*t}")
    for r in range(4): e(f"v_mov_b32 v{SQ+r}, 0")

    def reads(n):
        ch, i = n // 4, n % 4
        fa = FA[n % 2]
        out = [f"ds_read_b128 {vr(fa+24, 4)}, v{vXR} offset:{i*1024}"]
        for t in range(5):
            for hh in range(2):
                out.append(f"ds_read_b64_tr_b16 {vr(fa+4*t+2*hh, 2)}, v{vWR[i]} offset:{hh*2560 + 8*t}")
        for hh in range(2):
            out.append(f"ds_read_b64_tr_b16 {vr(fa+20+2*hh, 2)}, v{vKR[i]} offset:{hh*256}")
        return out
    def advance(ch, i):
        d = SLOT if ch < 3 else -3*SLOT
        out = [f"v_add_u32 v{vWR[i]}, {d}, v{vWR[i]}", f"v_add_u32 v{vKR[i]}, v{vKinc}, v{vKR[i]}"]
        if i == 3: out.append(f"v_add_u32 v{vXR}, {d}, v{vXR}")
        return out
    p.wait_vm(toks[0]); p.barrier()
    for r in reads(0): e(r)
    for n in range(20):
        ch, i = n // 4, n % 4
        fa = FA[n % 2]
        if n < 19:
            for a in advance(ch, i): e(a)
        if i == 3 and ch < 4:
            p.wait_vm(toks[ch+1]); p.barrier()
            if ch == 0:
                issue_chunk(4)
                e("v_lshrrev_b32 v20, 4, v0")
                e("v_bfe_u32 v21, v0, 2, 2")
                e("v_lshl_add_u32 v20, v20, 3, v21")
                e("v_lshlrev_b32 v20, 7, v20")
                e("v_and_b32 v21, 3, v0")
                e("v_lshl_add_u32 v20, v21, 3, v20")
                e(f"s_lshl_b32 s50, s{sW}, 5")
                e(f"v_add_u32 v20, s50, v20")
                e(f"ds_read_b64_tr_b16 v[24:25], v20 offset:{L_WO}")
                e(f"ds_read_b64_tr_b16 v[26:27], v20 offset:{L_WO + 512}")
                e(f"s_lshr_b32 s50, s{sK32}, 1")
                e("s_mul_i32 s50, s50, 40")
                e(f"s_lshl_b32 s45, s{sCG}, 2")
                e("s_add_u32 s50, s50, s45")
                e(f"s_add_u32 s50, s50, s{sW}")
                e("s_lshl_b32 s50, s50, 1")
                e(f"s_and_b32 s45, s{sK32}, 1")
                e("s_add_u32 s50, s50, s45")
                e("s_lshl_b32 s50, s50, 10")
                e("v_lshl_add_u32 v20, v0, 4, s50")
                e("buffer_store_dwordx4 v[24:27], v20, s[36:39], 0 offen")
        nxt = reads(n+1) if n < 19 else []
        mf = []
        for t in range(6):
            c = "0" if n == 0 else vr(ACC+4*t, 4)
            mf.append(f"v_mfma_f32_16x16x32_bf16 {vr(ACC+4*t, 4)}, {vr(fa+4*t, 4)}, {vr(fa+24, 4)}, {c}")
            if i == 0:
                c = "0" if (n == 0 and t == 0) else vr(CSA, 4)
                mf.append(f"v_mfma_f32_16x16x32_bf16 {vr(CSA, 4)}, {vr(fa+4*t, 4)}, {vr(SEL+4*t, 4)}, {c}")
        dots = [f"v_dot2c_f32_bf16 v{SQ+r}, v{fa+24+r}, v{fa+24+r}" for r in range(4)]
        p.wait_lg(p.lg_seq)
        k = 0
        for j, m in enumerate(mf):
            e(m)
            per = -(-len(nxt) // len(mf))
            for r in nxt[k:k+per]: e(r)
            k += per
            if j < 4: e(dots[j])
        if n == 17:
            e(f"s_add_u32 s50, s{sWOb}, {L_SLOT + SLOT}")
            e("v_lshl_add_u32 v20, v0, 4, s50")
            e(f"ds_write_b128 v20, {vr(CSA, 4)}")
        if n == 18:
            p.barrier()
            e(f"v_lshlrev_b32 v20, 4, v0")
            for w in range(4):
                e(f"ds_read_b128 {vr(160+4*w, 4)}, v20 offset:{L_SLOT + SLOT + 1024*w}")
    p.tag = 'k1e'
    CS = 160
    for r in (0, 2):
        e(f"v_pk_add_f32 {vr(CS+r,2)}, {vr(CS+r,2)}, {vr(CS+4+r,2)}")
        e(f"v_pk_add_f32 {vr(CS+8+r,2)}, {vr(CS+8+r,2)}, {vr(CS+12+r,2)}")
    for r in (0, 2):
        e(f"v_pk_add_f32 {vr(CS+r,2)}, {vr(CS+r,2)}, {vr(CS+8+r,2)}")
    e(f"v_add_f32 v{SQ}, v{SQ}, v{SQ+1}")
    e(f"v_add_f32 v{SQ+2}, v{SQ+2}, v{SQ+3}")
    e(f"v_add_f32 v{SQ}, v{SQ}, v{SQ+2}")
    e(f"v_mov_b32 v{SQ+1}, v{SQ}")
    e(f"v_mov_b32 v20, v{ACC+20}")
    e(f"v_mov_b32 v21, v{ACC+20}")
    e(f"v_permlane32_swap_b32 v{SQ}, v{SQ+1}")
    e("v_permlane32_swap_b32 v20, v21")
    e(f"v_add_f32 v{SQ}, v{SQ}, v{SQ+1}")
    e(f"v_mov_b32 v{SQ+1}, v{SQ}")
    e(f"v_mul_f32 v21, {f32(-1.0/D)}, v21")
    e(f"v_permlane16_swap_b32 v{SQ}, v{SQ+1}")
    e(f"v_add_f32 v{SQ}, v{SQ}, v{SQ+1}")
    e(f"v_mul_f32 v{SQ}, {f32(1.0/D)}, v{SQ}")
    e(f"v_fma_f32 v{SQ}, -v21, v21, v{SQ}")
    e(f"v_max_f32 v{SQ}, 0, v{SQ}")
    e(f"v_add_f32 v{SQ}, {f32(EPS)}, v{SQ}")
    e(f"v_rsq_f32 v22, v{SQ}")
    for t in range(6):
        for r in range(4):
            e(f"v_fmac_f32_dpp v{ACC+4*t+r}, v{CS+r}, v21 row_newbcast:{t} row_mask:0xf bank_mask:0xf")
    e(f"v_mul_f32 v24, {f32(QSCALE)}, v22")
    for t in range(6):
        m = "v[24:25]" if t < 5 else "v[22:23]"
        for r in (0, 2):
            e(f"v_pk_mul_f32 {vr(ACC+4*t+r,2)}, {vr(ACC+4*t+r,2)}, {m} op_sel_hi:[1,0]")
    O = 64
    for t in range(6):
        for r in (0, 2):
            e(f"v_cvt_pk_bf16_f32 v{O+2*t+r//2}, v{ACC+4*t+r}, v{ACC+4*t+r+1}")
    e("v_bfe_u32 v20, v0, 3, 1")
    e("v_mul_u32_u24 v20, 10240, v20")
    e("s_mul_i32 s50, s44, 20480")
    e(f"s_mul_i32 s45, s{sCB}, 1280")
    e("s_add_u32 s50, s50, s45")
    e("v_lshrrev_b32 v21, 4, v0")
    e("v_and_b32 v22, 7, v0")
    e("v_lshl_add_u32 v21, v21, 3, v22")
    e("v_lshl_add_u32 v22, v21, 4, v20")
    e("v_lshl_add_u32 v23, v21, 3, v20")
    e(f"buffer_store_dwordx4 {vr(O,4)}, v22, s[32:35], s50 offen")
    e(f"buffer_store_dwordx4 {vr(O+4,4)}, v22, s[32:35], s50 offen offset:512")
    e(f"buffer_store_dwordx2 {vr(O+8,2)}, v23, s[32:35], s50 offen offset:1024")
    e("v_and_b32 v20, 15, v0")
    e("s_lshl_b32 s45, s44, 4")
    e("v_add_u32 v20, s45, v20")
    e("v_lshrrev_b32 v21, 4, v0")
    e(f"s_cmp_ge_u32 s{sCB}, 6")
    e(f"s_cbranch_scc1 {end_label}")
    e(f"s_cmp_ge_u32 s{sCB}, 3")
    e("s_cbranch_scc1 L_k1_v")
    e(f"s_cmp_eq_u32 s{sCB}, 2")
    e("s_cbranch_scc1 L_k1_ke")
    e("v_lshrrev_b32 v22, 5, v20")
    e("v_lshlrev_b32 v22, 10, v22")
    e("v_and_b32 v23, 31, v20")
    e("v_lshl_add_u32 v22, v23, 4, v22")
    e("v_lshl_add_u32 v22, v21, 3, v22")
    e(f"s_lshl_b32 s50, s{sPair}, 9")
    e(f"s_add_u32 s50, s50, {KFM}")
    e("s_mov_b32 exec_hi, 0")
    e(f"buffer_store_dwordx2 {vr(O+10,2)}, v22, s[32:35], s50 offen")
    e("s_endpgm")
    p.label("L_k1_ke")
    e("v_lshrrev_b32 v22, 7, v20")
    e("v_lshlrev_b32 v22, 10, v22")
    e("v_and_b32 v23, 63, v20")
    e("v_lshl_add_u32 v22, v23, 4, v22")
    e("v_bfe_u32 v23, v20, 6, 1")
    e("v_lshl_add_u32 v22, v23, 3, v22")
    e(f"s_mov_b32 s50, {KFE}")
    e("s_mov_b32 exec_hi, 0")
    e("s_mov_b32 exec_lo, 0xffff")
    e(f"buffer_store_dwordx2 {vr(O+10,2)}, v22, s[32:35], s50 offen")
    e("s_endpgm")
    p.label("L_k1_v")
    e(f"s_lshl_b32 s45, s{sPair}, 1")
    e("v_add_u32 v21, s45, v21")
    e("v_cmp_eq_u32 vcc, 5, v21")
    e("v_mov_b32 v23, 0x3f803f80")
    e(f"v_cndmask_b32 v{O+10}, v{O+10}, v23, vcc")
    e(f"v_cndmask_b32 v{O+11}, v{O+11}, v23, vcc")
    e("v_lshrrev_b32 v22, 3, v20")
    e("v_mul_u32_u24 v22, 384, v22")
    e("v_lshl_add_u32 v22, v21, 6, v22")
    e("v_and_b32 v23, 7, v20")
    e("v_lshl_add_u32 v22, v23, 1, v22")
    e(f"s_mov_b32 s50, {VF}")
    e("s_mov_b32 exec_hi, 0")
    e(f"buffer_store_short v{O+10}, v22, s[32:35], s50 offen")
    e(f"buffer_store_short_d16_hi v{O+10}, v22, s[32:35], s50 offen offset:16")
    e(f"buffer_store_short v{O+11}, v22, s[32:35], s50 offen offset:32")
    e(f"buffer_store_short_d16_hi v{O+11}, v22, s[32:35], s50 offen offset:48")
```

```python
from common import *
L2_X = 0; L2_OF = 12288; L2_ST = 22528; L2_FL = 23040; L2_DUM = 23104; L2_MX = 23552
P2_LDS = 24576
SB = [32, 64]; OB = [96, 112]; QM = [128, 134]; QE = [132, 138]
PA = 140; AF = [180, 184]; RT = 188
KM, KE, VV = 0, 64, 80
vL16, vIDX, vIDX16, vZ, vXW, vXR, vOW, vOI, vCHK, vQM, vQE, vVS = 1, 2, 3, 4, 6, 7, 8, 9, 10, 11, 12, 13
CB = 208
R_LO = 0x1f800000
R_HI = 0x5d800000
sW = 40; sB = 41

def p2_setup(p):
    e = p.e
    e(f"v_lshlrev_b32 v{vL16}, 4, v0")
    e(f"v_mov_b32 v{vIDX}, 0xdddd")
    e("v_and_b32 v20, 8, v0")
    e("v_cmp_eq_u32 vcc, 0, v20")
    e("v_mov_b32 v20, 0xeeee")
    e("v_mov_b32 v21, 0x4444")
    e(f"v_cndmask_b32 v{vIDX16}, v20, v21, vcc")
    e(f"v_mov_b32 v{vZ}, 0")
    e(f"v_mov_b32 v{vZ+1}, 0")
    e(f"s_mul_i32 s42, s{sB}, 10240")
    e(f"v_add_u32 v{vQM}, s42, v{vL16}")
    e("v_and_b32 v20, 31, v0")
    e(f"v_lshl_add_u32 v{vQE}, v20, 3, s42")
    e("v_min_u32 v20, 23, v20")
    e("v_lshrrev_b32 v21, 5, v0")
    e("v_mul_u32_u24 v21, 384, v21")
    e(f"v_lshl_add_u32 v{vVS}, v20, 4, v21")
    e(f"s_mul_i32 s43, s{sW}, 3072")
    e(f"v_add_u32 v{vXW}, s43, v{vL16}")
    e("v_and_b32 v20, 7, v0")
    e("v_lshlrev_b32 v21, 2, v20")
    e("s_mov_b32 s44, 0x54435210")
    e("v_lshrrev_b32 v21, v21, s44") if False else e("v_mov_b32 v22, s44")
    e("v_lshrrev_b32 v21, v21, v22")
    e("v_and_b32 v21, 7, v21")
    e("v_lshrrev_b32 v22, 3, v0")
    e(f"s_lshl_b32 s44, s{sW}, 7")
    e("v_lshl_add_u32 v23, v21, 9, s44")
    e(f"v_lshl_add_u32 v{vXR}, v22, 4, v23")

def p2_ow(p):
    e = p.e
    e("v_and_b32 v20, 7, v0")
    e("v_lshlrev_b32 v21, 2, v20")
    e("v_mov_b32 v22, 0x54435210")
    e("v_lshrrev_b32 v21, v21, v22")
    e("v_and_b32 v21, 7, v21")
    e("v_lshrrev_b32 v22, 3, v0")
    e(f"s_mul_i32 s44, s{sW}, 5")
    e("v_add_u32 v21, s44, v21")
    e("v_lshrrev_b32 v23, 2, v21")
    e("v_lshlrev_b32 v23, 8, v23")
    e("v_and_b32 v21, 3, v21")
    e("v_lshl_add_u32 v23, v21, 2, v23")
    e("v_lshl_add_u32 v23, v22, 4, v23")
    e(f"v_add_u32 v23, {L2_OF}, v23")
    e("v_lshrrev_b32 v21, v20, 0x37") if False else e("v_mov_b32 v21, 0x37")
    e("v_lshrrev_b32 v21, v20, v21")
    e("v_and_b32 v21, 1, v21")
    e("v_cmp_eq_u32 vcc, 1, v21")
    e(f"v_mov_b32 v22, {L2_DUM}")
    e(f"v_cndmask_b32 v{vOW}, v22, v23, vcc")
    e(f"v_mul_u32_u24 v{vOI}, 1280, v21")
    e(f"v_mov_b32 v{vCHK}, 0")

def p2_main(p, slow, lf="", hooks=None):
    e = p.e
    hooks = hooks or {}
    p.tag = 'p2pro'
    e(f"s_mul_i32 s44, s{sW}, 320")
    e("s_add_u32 s44, s44, s42")
    xt = None
    for q in range(3):
        e(f"v_add_u32 v20, {64*q}, v0")
        e("v_mul_u32_u24 v21, 205, v20")
        e("v_lshrrev_b32 v21, 12, v21")
        e("v_mul_u32_u24 v21, 960, v21")
        e("v_lshl_add_u32 v21, v20, 4, v21")
        e(f"s_add_u32 m0, s43, {L2_X + 1024*q}")
        xt = e("buffer_load_dwordx4 v21, s[20:23], s44 offen lds")
    def loadq(g):
        e(f"s_mov_b32 s45, {QF + 1280*g}")
        e(f"buffer_load_dwordx4 {vr(QM[g%2],4)}, v{vQM}, s[16:19], s45 offen {lf}")
        e(f"buffer_load_dwordx2 {vr(QE[g%2],2)}, v{vQE}, s[16:19], s45 offen offset:1024 {lf}")
    loadq(0)
    e(f"s_lshl_b32 s46, s{sW}, 14")
    e(f"s_add_u32 s46, s46, {KFM}")
    e(f"s_lshl_b32 s47, s{sW}, 12")
    e(f"s_add_u32 s47, s47, {KFE}")
    e(f"s_mul_i32 s48, s{sW}, {32*768}")
    e(f"s_add_u32 s48, s48, {VF}")
    def loadk(pp):
        if pp % 2 == 0:
            e(f"buffer_load_dwordx4 {ar(KE+2*pp,4)}, v{vL16}, s[16:19], s47 offen offset:{512*pp} {lf}")
        for t in range(2):
            e(f"buffer_load_dwordx4 {ar(KM+8*pp+4*t,4)}, v{vL16}, s[16:19], s46 offen offset:{1024*t} {lf}")
        e("s_add_u32 s46, s46, 2048")
    def loadv(pp):
        for u in range(4):
            e(f"buffer_load_dwordx4 {ar(VV+16*pp+4*u,4)}, v{vVS}, s[16:19], s48 offen offset:{768*u} {lf}")
        e("s_add_u32 s48, s48, 3072")
    loadk(0)
    for pp in range(8):
        if pp < 7: loadk(pp+1)
        loadv(pp)
    p2_ow(p)
    e("v_bfe_u32 v20, v0, 2, 3")
    e("v_mul_u32_u24 v20, 320, v20")
    e("v_and_b32 v21, 3, v0")
    e("v_lshl_add_u32 v20, v21, 3, v20")
    e("v_add_u32 v20, s43, v20")
    e("v_cmp_gt_u32 vcc, 32, v0")
    e("v_mov_b32 v21, 0xffff0000")
    e("v_mov_b32 v22, 0x0c0c0c0c")
    e("v_mov_b32 v23, 0x01000c0c")
    e("v_cndmask_b32 v21, 0, v21, vcc")
    e("v_cndmask_b32 v22, v22, v23, vcc")
    p.wait_vm(xt)
    for t in range(10):
        e(f"ds_read_b64_tr_b16 {vr(SB[1]+2*t,2)}, v20 offset:{L2_X + 32*t}")
    for t in range(10):
        for r in range(2):
            s = SB[1] + 2*t + r
            e(f"v_perm_b32 v{PA+4*t+2*r}, v{s}, v{s}, v22")
            e(f"v_and_b32 v{PA+4*t+2*r+1}, v21, v{s}")
    ring = [('a', 208+8*i) for i in range(6)] + ([] if slow else [('v', 208+8*i) for i in range(6)])
    NR = len(ring)
    items = [(ks, t) for ks in range(10) for t in range(10)]
    def slot(n):
        if n >= 92: return ('a', KM + 8*(n-92))
        return ring[n % NR]
    st = dict(ld=0, mm=0, avail=0, ldk=92, afl=0)
    e(f"s_mul_i32 s49, s{sW}, 20480")
    e(f"s_add_u32 s49, s49, {WF}")
    def wload(n):
        ks, t = items[n]; k, b = slot(n)
        e(f"s_add_u32 s50, s49, {ks*81920 + t*2048}")
        e(f"buffer_load_dwordx4 {vr(b,4,k)}, v{vL16}, s[16:19], s50 offen {lf}")
        e(f"buffer_load_dwordx4 {vr(b+4,4,k)}, v{vL16}, s[16:19], s50 offen offset:1024 {lf}")
    def try_wload():
        if st['ld'] < 92 and st['ld'] < st['mm'] + NR:
            wload(st['ld']); st['ld'] += 1; return True
        return False
    def aload(ks):
        e(f"ds_read_b128 {vr(AF[ks%2],4)}, v{vL16} offset:{L2_OF + 1024*ks}")
    def try_aload():
        ks = st['afl']
        if ks*10 < st['avail'] and st['mm'] >= (ks-1)*10:
            aload(ks); st['afl'] += 1
    def try_sm16():
        n = st['mm']
        if n < min(st['afl']*10, 100) and (n < st['ld'] or (n >= 92 and n < st['ldk'])):
            ks, t = items[n]; k, b = slot(n)
            e(f"v_smfmac_f32_16x16x64_bf16 {vr(PA+4*t,4)}, {vr(AF[ks%2],4)}, {vr(b,8,k)}, v{vIDX16}")
            st['mm'] += 1; return True
        return False
    def X(P, c=None):
        g, pp = divmod(P, 8)
        c = c or (vr(CB, 32) if slow else "0")
        e(f"v_mfma_f32_32x32x4_2b_bf16 {vr(SB[P%2],32)}, {ar(KE+2*pp,2)}, {vr(QE[g%2],2)}, {c}")
    def M(P, t):
        g, pp = divmod(P, 8); d = vr(SB[P%2]+16*t, 16)
        e(f"v_mfma_f32_32x32x16_bf16 {d}, {ar(KM+8*pp+4*t,4)}, {vr(QM[g%2],4)}, {d}")
    def SM(P, u):
        g, pp = divmod(P, 8)
        e(f"v_smfmac_f32_32x32x32_bf16 {vr(OB[g%2],16)}, {ar(VV+16*pp+4*u,4)}, {vr(SB[P%2]+8*u,8)}, v{vIDX}")
    def zeroO(g):
        e(f"v_mfma_f32_32x32x8_bf16 {vr(OB[g%2],16)}, {vr(vZ,2)}, {vr(vZ,2)}, 0")
    def maxpass(g):
        b = SB[0]
        for pp in range(8):
            e(f"v_mfma_f32_32x32x4_2b_bf16 {vr(b,32)}, {ar(KE+2*pp,2)}, {vr(QE[g%2],2)}, 0")
            for t in range(2):
                d = vr(b+16*t, 16)
                e(f"v_mfma_f32_32x32x16_bf16 {d}, {ar(KM+8*pp+4*t,4)}, {vr(QM[g%2],4)}, {d}")
            if pp == 0: e(f"v_mov_b32 v24, v{b}")
            for r in range(0, 32, 2):
                e(f"v_max3_f32 v24, v24, v{b+r}, v{b+r+1}")
        e("v_mov_b32 v25, v24")
        e("v_permlane32_swap_b32 v24, v25")
        e("v_max_f32 v24, v24, v25")
        e(f"s_lshl_b32 s51, s{sW}, 2")
        e(f"v_add_u32 v25, s51, v{vL16}")
        p.barrier()
        e(f"ds_write_b32 v25, v24 offset:{L2_MX}")
        p.barrier()
        e(f"ds_read_b128 v[24:27], v{vL16} offset:{L2_MX}")
        e("v_max3_f32 v24, v24, v25, v26")
        e("v_max_f32 v24, v24, v27")
        for r in range(32): e(f"v_sub_f32 v{CB+r}, 0, v24")
    def xwrite(g, jq):
        e(f"ds_write_b128 v{vXW}, {vr(OB[g%2]+4*jq,4)} offset:{L2_X + 1024*jq}")
    def xread(w2):
        e(f"ds_read_b128 {vr(RT+4*w2,4)}, v{vXR} offset:{L2_X + 3072*w2}")
    def reduce_ops():
        return [
            f"v_pk_add_f32 {vr(RT,2)}, {vr(RT,2)}, {vr(RT+4,2)}",
            f"v_pk_add_f32 {vr(RT+8,2)}, {vr(RT+8,2)}, {vr(RT+12,2)}",
            f"v_pk_add_f32 {vr(RT,2)}, {vr(RT,2)}, {vr(RT+8,2)}",
            f"v_pk_add_f32 {vr(RT+2,2)}, {vr(RT+2,2)}, {vr(RT+6,2)}",
            f"v_pk_add_f32 {vr(RT+10,2)}, {vr(RT+10,2)}, {vr(RT+14,2)}",
            f"v_rcp_f32_dpp v{RT+4}, v{RT} quad_perm:[3,3,3,3] row_mask:0xf bank_mask:0xf",
            f"v_pk_add_f32 {vr(RT+2,2)}, {vr(RT+2,2)}, {vr(RT+10,2)}",
            f"v_pk_mul_f32 {vr(RT,2)}, {vr(RT,2)}, {vr(RT+4,2)} op_sel_hi:[1,0]",
            f"v_pk_mul_f32 {vr(RT+2,2)}, {vr(RT+2,2)}, {vr(RT+4,2)} op_sel_hi:[1,0]",
            f"v_cvt_pk_bf16_f32 v{RT}, v{RT}, v{RT+1}",
            f"v_cvt_pk_bf16_f32 v{RT+1}, v{RT+2}, v{RT+3}",
            f"v_subrev_u32 v{RT+4}, {R_LO}, v{RT+4}",
            f"v_max_u32 v{vCHK}, v{vCHK}, v{RT+4}",
        ]
    def owrite():
        e(f"ds_write2_b32 v{vOW}, v{RT}, v{RT+1} offset0:0 offset1:32")
        e(f"v_add_u32 v{vOW}, v{vOI}, v{vOW}")
    def publish(g):
        st['avail'] = (80*(g+1)//64)*10

    p.tag = 'p2first'
    zeroO(0)
    if slow: maxpass(0)
    X(0); M(0, 0); M(0, 1)
    for P in range(64):
        g, pp = divmod(P, 8)
        p.tag = f'p2_{g}_{pp}'
        c = SB[P % 2]
        vq = []
        if g > 0 and pp == 1: vq = reduce_ops()
        def E(a, b):
            for r in range(a, b): e(f"v_exp_f32 v{c+r}, v{c+r}")
        def mem(slotname):
            k = (pp, slotname)
            if g > 0:
                if k == (0, 'B'): xwrite(g-1, 0)
                if k == (0, 'D'): xwrite(g-1, 1)
                if k == (0, 'E'): xwrite(g-1, 2)
                if k == (1, 'A'):
                    p.barrier()
                    for w2 in range(4): xread(w2)
                if k == (1, 'E'): owrite()
                if k == (2, 'B'):
                    p.barrier(); publish(g-1)
            if k == (3, 'A') and g < 7: loadq(g+1)
            if slotname in 'BE': try_aload()
            if slotname in 'CF' and (g > 0 or pp >= 4): try_wload()
            if slotname in 'AD' and g == 0 and pp >= 6: try_wload()
            if g == 7 and slotname == 'A' and st['ldk'] < 100 and st['ldk'] - 92 <= pp:
                wload(st['ldk']); st['ldk'] += 1
            h = hooks.get((g, pp, slotname))
            if h: h()
        E(0, 2)
        if P > 0: SM(P-1, 3)
        mem('A')
        E(2, 5)
        if P < 63:
            if slow and pp == 7: maxpass(g+1)
            X(P+1)
        E(5, 13)
        SM(P, 0); mem('B')
        E(13, 16)
        try_sm16(); mem('C')
        E(16, 18)
        SM(P, 1); mem('D')
        for x in vq[:7]: e(x)
        E(18, 21)
        if P < 63: M(P+1, 0)
        for x in vq[7:]: e(x)
        E(21, 24)
        if P < 63: M(P+1, 1)
        E(24, 27)
        SM(P, 2); mem('E')
        E(27, 30)
        if pp == 1 and g < 7: zeroO(g+1)
        else: try_sm16()
        mem('F')
        E(30, 32)
    p.tag = 'p2tail'
    SM(63, 3)
    while st['mm'] < 80:
        assert try_sm16(); try_wload()
    while try_wload(): pass
    for jq in range(3): xwrite(7, jq)
    p.barrier()
    for w2 in range(4): xread(w2)
    for x in reduce_ops(): e(x)
    owrite()
    if not slow:
        e(f"v_cmp_lt_u32 vcc, {R_HI - R_LO}, v{vCHK}")
        e("s_cmp_lg_u64 vcc, 0")
        e("s_cselect_b32 s51, 1, 0")
        e(f"s_lshl_b32 s50, s{sW}, 2")
        e("v_mov_b32 v20, s50")
        e("v_mov_b32 v21, s51")
        e(f"ds_write_b32 v20, v21 offset:{L2_FL}")
    p.barrier(); publish(7)
    try_aload(); try_aload()
    if not slow:
        e(f"ds_read_b128 v[20:23], v{vZ} offset:{L2_FL}")
    while st['mm'] < 100:
        assert try_sm16(); try_wload()
    if not slow:
        e("v_or3_b32 v20, v20, v21, v22")
        e("v_or_b32 v20, v20, v23")
        e("v_readfirstlane_b32 s51, v20")

def p2_epilogue(p, sf=""):
    e = p.e
    p.tag = 'p2epi'
    Hh = lambda t, r: PA + 8*t + r
    e("v_bfe_u32 v20, v0, 4, 1")
    e(f"s_mov_b32 s50, {HT - HTP}")
    e("v_mul_lo_u32 v20, v20, s50")
    e("v_lshrrev_b32 v21, 5, v0")
    e("v_lshl_add_u32 v20, v21, 8, v20")
    e("v_and_b32 v21, 15, v0")
    e("v_lshl_add_u32 v14, v21, 4, v20")
    e(f"s_mul_i32 s52, s{sW}, {5*131072}")
    e(f"s_lshl_b32 s50, s{sB}, 9")
    e("s_add_u32 s52, s52, s50")
    e(f"s_add_u32 s52, s52, {HTP}")
    e("v_bfe_u32 v20, v0, 2, 3")
    e("v_lshlrev_b32 v20, 6, v20")
    e("v_lshrrev_b32 v21, 5, v0")
    e(f"s_lshl_b32 s50, s{sW}, 4")
    e("v_lshl_add_u32 v21, v21, 3, s50")
    e("v_add_u32 v15, v20, v21")
    e("v_and_b32 v21, 3, v0")
    e("v_lshl_add_u32 v16, v21, 4, v20")
    for t in range(5):
        for r in range(4): e(f"v_permlane32_swap_b32 v{Hh(t,r)}, v{Hh(t,r)+4}")
        for r in (0, 2): e(f"v_pk_add_f32 {vr(Hh(t,r),2)}, {vr(Hh(t,r),2)}, {vr(Hh(t,r)+4,2)}")
    SU, SQ = 32, 36
    for r in (0, 2):
        e(f"v_pk_add_f32 {vr(SU+r,2)}, {vr(Hh(0,r),2)}, {vr(Hh(1,r),2)}")
        e(f"v_pk_mul_f32 {vr(SQ+r,2)}, {vr(Hh(0,r),2)}, {vr(Hh(0,r),2)}")
    for t in range(1, 5):
        for r in (0, 2):
            if t > 1: e(f"v_pk_add_f32 {vr(SU+r,2)}, {vr(SU+r,2)}, {vr(Hh(t,r),2)}")
            e(f"v_pk_fma_f32 {vr(SQ+r,2)}, {vr(Hh(t,r),2)}, {vr(Hh(t,r),2)}, {vr(SQ+r,2)}")
    def dpp(d, s, ctl, bm=0xf): e(f"v_add_f32_dpp v{d}, v{s}, v{s} {ctl} row_mask:0xf bank_mask:{hex(bm)}")
    for a in (SU, SU+1, SQ, SQ+1): dpp(a, a, "row_ror:8", 0x3)
    for a in (SU, SU+1, SQ, SQ+1): dpp(a, a+2, "row_ror:8", 0xc)
    O = 64
    cv = [f"v_cvt_pk_bf16_f32 v{O+4*t+2+r//2}, v{Hh(t,r)}, v{Hh(t,r)+1}" for t in range(5) for r in (0, 2)]
    dpp(40, SU, "row_half_mirror", 0x5); dpp(41, SQ, "row_half_mirror", 0x5)
    e(cv[0])
    dpp(40, SU+1, "row_half_mirror", 0xa); dpp(41, SQ+1, "row_half_mirror", 0xa)
    e(cv[1])
    dpp(40, 40, "quad_perm:[1,0,3,2]"); dpp(41, 41, "quad_perm:[1,0,3,2]")
    e(cv[2])
    dpp(40, 40, "quad_perm:[2,3,0,1]"); dpp(41, 41, "quad_perm:[2,3,0,1]")
    e(f"ds_write_b64 v15, v[40:41] offset:{L2_ST}")
    for x in cv[3:6]: e(x)
    p.barrier()
    e(f"ds_read_b128 v[40:43], v16 offset:{L2_ST}")
    for x in cv[6:]: e(x)
    e("v_pk_add_f32 v[40:41], v[40:41], v[42:43]")
    dpp(40, 40, "quad_perm:[1,0,3,2]"); dpp(41, 41, "quad_perm:[1,0,3,2]")
    dpp(40, 40, "quad_perm:[2,3,0,1]"); dpp(41, 41, "quad_perm:[2,3,0,1]")
    e(f"v_mul_f32 v40, {f32(-1.0/D)}, v40")
    e(f"v_mul_f32 v41, {f32(1.0/D)}, v41")
    e("v_fma_f32 v41, -v40, v40, v41")
    e("v_max_f32 v41, 0, v41")
    e(f"v_add_f32 v42, {f32(EPS)}, v41")
    e(f"v_fmac_f32 v41, {f32(EPS)}, v42")
    e("v_rsq_f32 v41, v41")
    e("v_mul_f32 v40, v40, v41")
    for r in range(4):
        e(f"v_mov_b32_dpp v{44+r}, v41 row_newbcast:{4*r} row_mask:0xf bank_mask:0xf")
    for r in range(4):
        e(f"v_mov_b32_dpp v{48+r}, v40 row_newbcast:{4*r} row_mask:0xf bank_mask:0xf")
    for t in range(5):
        for r in (0, 2):
            e(f"v_pk_fma_f32 {vr(Hh(t,r),2)}, {vr(Hh(t,r),2)}, {vr(44+r,2)}, {vr(48+r,2)}")
    for t in range(5):
        for r in (0, 2):
            e(f"v_cvt_pk_bf16_f32 v{O+4*t+r//2}, v{Hh(t,r)}, v{Hh(t,r)+1}")
    for t in range(5):
        for r in range(2): e(f"v_permlane16_swap_b32 v{O+4*t+r}, v{O+4*t+2+r}")
        e(f"buffer_store_dwordx4 {vr(O+4*t,4)}, v14, s[16:19], s52 offen {sf}")
        if t < 4: e("s_add_u32 s52, s52, 131072")

def gen_k2(p, end_label):
    e = p.e
    p.tag = 'k2'
    e("s_cmp_ge_u32 s2, 256")
    e(f"s_cbranch_scc1 {end_label}")
    e("s_load_dwordx2 s[4:5], s[0:1], 0")
    e("s_load_dwordx2 s[14:15], s[0:1], 96")
    e("v_lshrrev_b32 v1, 6, v0")
    e("v_and_b32 v0, 63, v0")
    e(f"v_readfirstlane_b32 s{sW}, v1")
    e(f"s_mov_b32 s{sB}, s2")
    p2_setup(p)
    srd(p, 16, 14, WS_END)
    srd(p, 20, 4, S*D*2)
    p2_main(p, False)
    e("s_cmp_lg_u32 s51, 0")
    e("s_cbranch_scc1 L_p2_slow")
    p.label("L_p2_epi")
    p2_epilogue(p)
    e("s_endpgm")
    p.label("L_p2_slow")
    p.fence(); p.barrier()
    p2_main(p, True)
    p.fence()
    e("s_branch L_p2_epi")
```

```python
from common import *
sW = 40
L_W = 32768
L_EX3 = 0
L_H4 = 0
P34_LDS = 163840
sDB3, sFB3, sDB4, sSB4, sLW = 60, 61, 62, 63, 64
vL16 = 1
v3S, v3R = 17, (18, 19)

def p3_ids(p):
    e = p.e
    e("s_and_b32 s50, s2, 7")
    e("s_lshr_b32 s51, s2, 3")
    e("s_mul_i32 s52, s51, 52")
    e("s_lshr_b32 s52, s52, 8")
    e("s_mul_i32 s53, s52, 5")
    e(f"s_sub_u32 s{sDB3}, s51, s53")
    e("s_and_b32 s53, s50, 1")
    e("s_mul_i32 s53, s53, 5")
    e(f"s_add_u32 s{sDB3}, s{sDB3}, s53")
    e("s_lshr_b32 s53, s50, 1")
    e("s_mul_i32 s53, s53, 6")
    e(f"s_add_u32 s{sFB3}, s52, s53")
def p4_ids(p):
    e = p.e
    e("s_and_b32 s50, s2, 7")
    e("s_lshr_b32 s51, s2, 3")
    e("s_and_b32 s52, s50, 1")
    e("s_lshl_b32 s52, s52, 2")
    e("s_and_b32 s53, s51, 3")
    e(f"s_add_u32 s{sDB4}, s52, s53")
    e("s_lshr_b32 s52, s50, 1")
    e("s_lshl_b32 s52, s52, 3")
    e("s_lshr_b32 s53, s51, 2")
    e(f"s_add_u32 s{sSB4}, s52, s53")
assert all((i*52) >> 8 == i//5 for i in range(32))

def lw_base(p):
    p.e(f"s_lshl_b32 s{sLW}, s{sW}, 15")
    p.e(f"s_add_u32 s{sLW}, s{sLW}, {L_W}")

def p3_addr(p):
    e = p.e
    e("v_lshrrev_b32 v20, 5, v0")
    e("v_bfe_u32 v21, v0, 2, 2")
    e("v_lshl_add_u32 v20, v20, 2, v21")
    e("v_mul_u32_u24 v20, 3072, v20")
    e("v_bfe_u32 v21, v0, 4, 1")
    e("v_lshl_add_u32 v20, v21, 6, v20")
    e("v_and_b32 v21, 3, v0")
    e("v_lshl_add_u32 v20, v21, 4, v20")
    e(f"s_mul_i32 s50, s{sW}, {512*3072}")
    e(f"s_lshl_b32 s51, s{sFB3}, 7")
    e("s_add_u32 s50, s50, s51")
    e(f"v_add_u32 v{v3S}, s50, v20")
def p3_raddr(p):
    e = p.e
    e("v_lshrrev_b32 v20, 5, v0")
    e("v_lshlrev_b32 v20, 10, v20")
    e("v_bfe_u32 v21, v0, 2, 2")
    e("v_lshl_add_u32 v20, v21, 6, v20")
    e("v_bfe_u32 v21, v0, 4, 1")
    e("v_lshl_add_u32 v20, v21, 5, v20")
    e("v_and_b32 v21, 1, v0")
    e("v_lshl_add_u32 v20, v21, 4, v20")
    e("v_bfe_u32 v21, v0, 1, 1")
    e("v_lshl_add_u32 v20, v21, 3, v20")
    e(f"s_and_b32 s50, s{sW}, 1")
    e("s_lshl_b32 s50, s50, 5")
    e(f"s_lshr_b32 s51, s{sW}, 1")
    e("s_lshl_b32 s51, s51, 8")
    e("s_or_b32 s50, s50, s51")
    e(f"s_or_b32 s50, s50, s{sLW}")
    e(f"v_xor_b32 v{v3R[0]}, s50, v20")
    e(f"v_xor_b32 v{v3R[1]}, 256, v{v3R[0]}")
def p3_dma(p, q):
    p.e(f"s_add_u32 m0, s{sLW}, {(q % 32)*1024}")
    p.e(f"s_mov_b32 s65, {q*8*3072}")
    return p.e(f"buffer_load_dwordx4 v{v3S}, s[24:27], s65 offen lds")
def p3_tr(step):
    return [f"ds_read_b64_tr_b16 {ar(8*step+4*ft+2*hh,2)}, v{v3R[ft]} offset:{(step%16)*2048 + hh*512}" for ft in range(2) for hh in range(2)]

def gelu_ops(b, t):
    o = []
    for r in range(0, 8, 2): o.append(f"v_pk_mul_f32 {vr(t+r,2)}, {vr(b+r,2)}, {vr(b+r,2)}")
    for r in range(0, 8, 2): o.append(f"v_pk_fma_f32 {vr(t+r,2)}, {vr(t+r,2)}, s[66:67], v[22:23]")
    for r in range(0, 8, 2): o.append(f"v_pk_mul_f32 {vr(t+r,2)}, {vr(t+r,2)}, {vr(b+r,2)}")
    for r in range(8): o.append(f"v_exp_f32 v{t+r}, v{t+r}")
    for r in range(0, 8, 2): o.append(f"v_pk_add_f32 {vr(t+r,2)}, {vr(t+r,2)}, 1.0 op_sel_hi:[1,0]")
    for r in range(8): o.append(f"v_rcp_f32 v{t+r}, v{t+r}")
    for r in range(0, 8, 2): o.append(f"v_pk_mul_f32 {vr(b+r,2)}, {vr(t+r,2)}, {vr(b+r,2)}")
    for r in range(0, 8, 2): o.append(f"v_cvt_pk_bf16_f32 v{t+r//2}, v{b+r}, v{b+r+1}")
    return o

def p3_pre(p):
    e = p.e
    e("v_lshrrev_b32 v20, 5, v0")
    e("v_lshlrev_b32 v20, 4, v20")
    e(f"s_lshl_b32 s50, s{sFB3}, 7")
    e(f"s_lshl_b32 s51, s{sW}, 5")
    e("s_add_u32 s50, s50, s51")
    e("buffer_load_dwordx4 v[24:27], v20, s[32:35], s50 offen")
    c0 = -2.0 * LOG2E * (2.0/3.141592653589793) ** 0.5
    e(f"s_mov_b32 s66, {f32(c0*0.044715)}")
    e("s_mov_b32 s67, s66")
    e(f"v_mov_b32 v22, {f32(c0)}")
    e("v_mov_b32 v23, v22")
    e(f"s_mul_i32 s50, s{sW}, 6144")
    e(f"v_add_u32 v10, s50, v{vL16}")
    for sg in range(1, 4):
        e(f"s_xor_b32 s50, s{sW}, {sg}")
        e("s_mul_i32 s50, s50, 6144")
        e(f"v_add_u32 v{10+sg}, s50, v{vL16}")
    e("v_bfe_u32 v20, v0, 4, 1")
    e(f"v_mul_u32_u24 v20, {48*1024}, v20")
    e("v_lshrrev_b32 v21, 5, v0")
    e("v_lshl_add_u32 v20, v21, 8, v20")
    e("v_and_b32 v21, 15, v0")
    e("v_lshl_add_u32 v14, v21, 4, v20")
    e(f"s_mul_i32 s70, s{sDB3}, {4*48*1024}")
    e(f"s_lshl_b32 s50, s{sFB3}, 11")
    e("s_add_u32 s70, s70, s50")
    e(f"s_lshl_b32 s50, s{sW}, 9")
    e("s_add_u32 s70, s70, s50")
    e(f"s_add_u32 s70, s70, {GF}")
    for r in range(4):
        e(f"v_and_b32 v{3+2*r}, 0xffff0000, v{24+r}")
        e(f"v_lshlrev_b32 v{2+2*r}, 16, v{24+r}")

def p3_main(p, tok2, lf="", sf="", after_loads=None):
    e = p.e
    p.tag = 'p3'
    ACC = [32, 64]; RING = 128; NR = 32; T = 96
    e(f"s_lshl_b32 s71, s{sDB3}, 18")
    e(f"s_lshl_b32 s50, s{sW}, 15")
    e("s_add_u32 s71, s71, s50")
    e(f"s_add_u32 s71, s71, {HTP}")
    def hload(n):
        dt, st = divmod(n, 32)
        if n % 4 == 0: e(f"s_add_u32 s50, s71, {dt*131072 + st*1024}")
        e(f"buffer_load_dwordx4 {vr(RING+4*(n%NR),4)}, v{vL16}, s[16:19], s50 offen offset:{(n%4)*1024} {lf}")
    for n in range(NR): hload(n)
    def xw(dt): return [f"ds_write_b128 v10, {vr(ACC[dt]+8*sg+4*k,4)} offset:{L_EX3 + (sg-1)*2048 + k*1024}" for sg in range(1, 4) for k in range(2)]
    def xr(): return [f"ds_read_b128 {vr(T+8*(sg-1)+4*k,4)}, v{10+sg} offset:{L_EX3 + (sg-1)*2048 + k*1024}" for sg in range(1, 4) for k in range(2)]
    def fin(dt):
        a = ACC[dt]; o = []
        for r in range(0, 8, 2): o.append(f"v_pk_add_f32 {vr(a+r,2)}, {vr(a+r,2)}, {vr(2+r,2)}")
        for r in range(0, 8, 2): o.append(f"v_pk_add_f32 {vr(a+r,2)}, {vr(a+r,2)}, {vr(T+r,2)}")
        for r in range(0, 8, 2): o.append(f"v_pk_add_f32 {vr(T+8+r,2)}, {vr(T+8+r,2)}, {vr(T+16+r,2)}")
        for r in range(0, 8, 2): o.append(f"v_pk_add_f32 {vr(a+r,2)}, {vr(a+r,2)}, {vr(T+8+r,2)}")
        o += gelu_ops(a, T+24)
        if dt: o.append(f"s_add_u32 s70, s70, {2*48*1024}")
        o.append(f"buffer_store_dwordx4 {vr(T+24,4)}, v14, s[16:19], s70 offen {sf}")
        return o
    extra = []
    for n in range(64):
        dt, st = divmod(n, 32)
        if dt == 0 and 4 <= st < 20:
            p.wait_vm(tok2[2*(st-4)+1]); extra += p3_tr(st+12)
        if n == 36: extra += xw(0)
        if n == 42: extra += ['BAR'] + xr()
        if n == 46: extra += fin(0)
        if n == 62: extra += ['BAR']
        for ft in range(2):
            d = vr(ACC[dt]+16*ft, 16)
            e(f"v_mfma_f32_32x32x16_bf16 {d}, {ar(8*st+4*ft,4)}, {vr(RING+4*(n%NR),4)}, {'0' if st == 0 else d}")
            if ft == 1 and n + NR < 64: hload(n + NR)
            if ft == 1 and n >= 32 and after_loads: after_loads(n - 32)
            budget = 20
            while extra and budget > 0:
                x = extra.pop(0)
                if x == 'BAR': p.barrier(); continue
                e(x)
                budget -= 20 if x.startswith('ds_write') else 8 if x.startswith(('v_exp', 'v_rcp')) else 4
    assert not extra
    p.tag = 'p3tail'
    for x in xw(1): e(x)
    p.barrier()
    for x in xr() + fin(1): e(x)

def gen_k3(p, end_label):
    e = p.e
    p.tag = 'k3'
    e("s_cmp_ge_u32 s2, 240")
    e(f"s_cbranch_scc1 {end_label}")
    e("s_load_dwordx4 s[4:7], s[0:1], 48")
    e("s_load_dwordx2 s[14:15], s[0:1], 96")
    e("v_lshrrev_b32 v1, 6, v0")
    e("v_and_b32 v0, 63, v0")
    e(f"v_readfirstlane_b32 s{sW}, v1")
    e(f"v_lshlrev_b32 v{vL16}, 4, v0")
    p3_ids(p); lw_base(p); p3_addr(p)
    srd(p, 24, 4, S*F*2)
    t1 = [p3_dma(p, q) for q in range(32)]
    srd(p, 16, 14, WS_END)
    srd(p, 32, 6, F*2)
    p3_raddr(p)
    t2 = []
    for st in range(16):
        p.wait_vm(t1[2*st+1])
        for x in p3_tr(st): e(x)
        if st >= 1:
            p.wait_lg(p.lg_seq - 4)
            t2 += [p3_dma(p, 32+2*(st-1)), p3_dma(p, 33+2*(st-1))]
    p.wait_lg(p.lg_seq)
    t2 += [p3_dma(p, 62), p3_dma(p, 63)]
    p3_pre(p)
    p3_main(p, t2)

v4S = 15; v4R = (28, 29, 30, 31)
def p4_addr(p):
    e = p.e
    e("v_bfe_u32 v20, v0, 4, 1")
    e("v_bfe_u32 v21, v0, 2, 2")
    e("v_lshl_add_u32 v21, v20, 3, v21")
    e("v_lshlrev_b32 v21, 12, v21")
    e("v_lshlrev_b32 v20, 1, v20")
    e("v_xor_b32 v20, v20, v0")
    e("v_and_b32 v20, 3, v20")
    e("v_lshl_add_u32 v21, v20, 4, v21")
    e("v_lshrrev_b32 v20, 5, v0")
    e("v_lshl_add_u32 v21, v20, 6, v21")
    e(f"s_mul_i32 s50, s{sW}, {384*4096}")
    e(f"s_lshl_b32 s51, s{sSB4}, 7")
    e("s_add_u32 s50, s50, s51")
    e(f"v_add_u32 v{v4S}, s50, v21")
def p4_raddr(p):
    e = p.e
    e("v_lshrrev_b32 v20, 5, v0")
    e("v_lshlrev_b32 v20, 11, v20")
    e("v_bfe_u32 v21, v0, 2, 3")
    e("v_lshl_add_u32 v20, v21, 6, v20")
    e("v_bfe_u32 v21, v0, 4, 1")
    e("v_lshl_add_u32 v20, v21, 5, v20")
    e("v_and_b32 v21, 3, v0")
    e("v_lshl_add_u32 v20, v21, 3, v20")
    e(f"s_and_b32 s50, s{sW}, 1")
    e("s_lshl_b32 s50, s50, 5")
    e(f"s_lshr_b32 s51, s{sW}, 1")
    e("s_lshl_b32 s51, s51, 9")
    e("s_or_b32 s50, s50, s51")
    e(f"s_or_b32 s50, s50, s{sLW}")
    e(f"v_xor_b32 v{v4R[0]}, s50, v20")
    for sg in range(1, 4):
        e(f"v_xor_b32 v{v4R[sg]}, {(sg&1)*32 + (sg>>1)*512}, v{v4R[0]}")
def p4_dma(p, q):
    st, a, hh = q // 4, (q // 2) % 2, q % 2
    p.e(f"s_add_u32 m0, s{sLW}, {(q % 32)*1024}")
    p.e(f"s_mov_b32 s65, {(32*st + 16*a + 4*hh)*4096}")
    return p.e(f"buffer_load_dwordx4 v{v4S}, s[28:31], s65 offen lds")
def p4_tr(step):
    return [f"ds_read_b64_tr_b16 {ar(16*step+4*sg+2*hh,2)}, v{v4R[sg]} offset:{(step%8)*4096 + hh*1024}" for sg in range(4) for hh in range(2)]
A4 = 32
def p4_hdma(p, lf=""):
    e = p.e
    e(f"s_lshl_b32 s50, s{sSB4}, 3")
    e(f"s_lshl_b32 s51, s{sW}, 1")
    e("s_add_u32 s50, s50, s51")
    e("s_lshl_b32 s52, s50, 4")
    e("s_lshl_b32 s50, s50, 9")
    e(f"s_add_u32 s50, s50, {HT}")
    e(f"s_mul_i32 s51, s{sDB4}, 80")
    e(f"s_mul_i32 s53, s{sW}, 3072")
    tok = None
    for q in range(3):
        e("v_lshrrev_b32 v20, 1, v0")
        e(f"v_add3_u32 v20, v20, s51, {32*q}")
        e("v_lshrrev_b32 v21, 5, v20")
        e("v_lshlrev_b32 v21, 17, v21")
        e("v_and_b32 v20, 31, v20")
        e("v_lshl_add_u32 v21, v20, 4, v21")
        e("v_and_b32 v20, 1, v0")
        e("v_lshl_add_u32 v21, v20, 9, v21")
        e(f"s_add_u32 m0, s53, {L_H4 + 1024*q}")
        tok = e(f"buffer_load_dwordx4 v21, s[16:19], s50 offen {lf} lds")
    e("v_and_b32 v20, 15, v0")
    e("v_lshlrev_b32 v20, 1, v20")
    e("buffer_load_ushort v22, v20, s[36:39], s52 offen")
    return tok
def p4_pre(p, htok):
    e = p.e
    e("v_lshl_add_u32 v20, v0, 3, s53")
    p.wait_vm(htok)
    for t in range(5): e(f"ds_read_b64_tr_b16 {vr(112+2*t,2)}, v20 offset:{L_H4 + 512*t}")
    e("v_lshrrev_b32 v20, 5, v0")
    e("v_lshl_add_u32 v20, v20, 2, v0")
    e("v_and_b32 v21, 48, v0")
    e("v_and_or_b32 v23, v20, 15, v21")
    e(f"v_lshl_add_u32 v2, v23, 4, s{sLW}")
    e("v_xor_b32 v3, 128, v2")
    e("v_lshrrev_b32 v20, 4, v0")
    e("v_lshl_add_u32 v20, v20, 2, v0")
    e("v_and_or_b32 v23, v20, 15, v21")
    e(f"v_lshl_add_u32 v4, v23, 4, s{sLW}")
    e("v_lshrrev_b32 v20, 2, v0")
    e("v_lshl_add_u32 v20, v0, 2, v20")
    e("v_and_b32 v20, 15, v20")
    e("v_lshlrev_b32 v20, 4, v20")
    e("v_and_b32 v21, 3, v0")
    e("v_lshl_add_u32 v24, v21, 8, v20")
    e("v_and_b32 v21, 1, v0")
    e("v_lshl_add_u32 v20, v21, 9, v20")
    e("v_bfe_u32 v21, v0, 1, 1")
    e("v_lshl_add_u32 v20, v21, 12, v20")
    for sg in range(4):
        e(f"s_xor_b32 s50, s{sW}, {sg}")
        e("s_lshl_b32 s50, s50, 15")
        e(f"s_add_u32 s50, s50, {L_W + sg*1024}")
        e(f"v_add_u32 v{5+sg}, s50, v20")
        e(f"v_add_u32 v{9+sg}, s50, v24")
    e("v_lshrrev_b32 v20, 2, v0")
    e("v_mul_u32_u24 v20, 1280, v20")
    e("v_and_b32 v21, 3, v0")
    e("v_lshl_add_u32 v13, v21, 4, v20")
    e("v_lshl_add_u32 v14, v21, 3, v20")
    e(f"s_lshl_b32 s70, s{sSB4}, 2")
    e(f"s_add_u32 s70, s70, s{sW}")
    e("s_mul_i32 s70, s70, 20480")
    e(f"s_mul_i32 s50, s{sDB4}, 160")
    e("s_add_u32 s70, s70, s50")
    e("v_lshlrev_b32 v22, 16, v22")
    for t in range(5):
        a = A4 + 16*t
        for r in range(2):
            e(f"v_lshlrev_b32 v{a+2*r}, 16, v{112+2*t+r}")
            e(f"v_and_b32 v{a+2*r+1}, 0xffff0000, v{112+2*t+r}")
        for r in range(2):
            e(f"v_pk_add_f32 {vr(a+2*r,2)}, {vr(a+2*r,2)}, v[22:23] op_sel_hi:[1,0]")

def p4_main(p, tok2, lf=""):
    e = p.e
    p.tag = 'p4'
    RING = 128; NR = 32
    e(f"s_mul_i32 s71, s{sDB4}, {5*48*1024}")
    e(f"s_mul_i32 s50, s{sW}, 12288")
    e("s_add_u32 s71, s71, s50")
    e(f"s_add_u32 s71, s71, {GF}")
    def gload(n):
        t, st = divmod(n, 12)
        if n % 4 == 0: e(f"s_add_u32 s50, s71, {t*48*1024 + st*1024}")
        e(f"buffer_load_dwordx4 {vr(RING+4*(n%NR),4)}, v{vL16}, s[16:19], s50 offen offset:{(n%4)*1024} {lf}")
    for n in range(NR): gload(n)
    def xw(t): return [f"ds_write_b128 v{4 if t == 4 else 2 + t%2}, {vr(A4+16*t+4*sg,4)} offset:{t*4096 + sg*1024}" for sg in range(4)]
    def fin(pi):
        a = A4 + 32*pi; o = ['BAR']
        if pi < 2:
            for sg in range(4):
                for k in range(2): o.append(f"ds_read_b128 {vr(a+8*sg+4*k,4)}, v{5+sg} offset:{pi*8192 + k*256}")
            n = 8
        else:
            for sg in range(4): o.append(f"ds_read_b128 {vr(a+4*sg,4)}, v{9+sg} offset:16384")
            n = 4
        o.append('GAP')
        for r in range(0, n, 2): o.append(f"v_pk_add_f32 {vr(a+r,2)}, {vr(a+r,2)}, {vr(a+n+r,2)}")
        for r in range(0, n, 2): o.append(f"v_pk_add_f32 {vr(a+2*n+r,2)}, {vr(a+2*n+r,2)}, {vr(a+3*n+r,2)}")
        for r in range(0, n, 2): o.append(f"v_pk_add_f32 {vr(a+r,2)}, {vr(a+r,2)}, {vr(a+2*n+r,2)}")
        for r in range(0, n, 2): o.append(f"v_cvt_pk_bf16_f32 v{a+n+r//2}, v{a+r}, v{a+r+1}")
        if pi < 2: o.append(f"buffer_store_dwordx4 {vr(a+n,4)}, v13, s[72:75], s70 offen offset:{64*pi}")
        else: o.append(f"buffer_store_dwordx2 {vr(a+n,2)}, v14, s[72:75], s70 offen offset:128")
        return o
    extra = []; hold = 0
    for n in range(60):
        t, st = divmod(n, 12)
        if t == 0 and 2 <= st < 6:
            p.wait_vm(tok2[4*(st-2)+3]); extra += p4_tr(st+6)
        if t > 0 and st == 2: extra += xw(t-1)
        if t in (2, 4) and st == 5: extra += fin(t//2 - 1)
        for sg in range(4):
            d = vr(A4+16*t+4*sg, 4)
            c = '0' if (st == 0 and sg > 0) else d
            e(f"v_mfma_f32_16x16x32_bf16 {d}, {vr(RING+4*(n%NR),4)}, {ar(16*st+4*sg,4)}, {c}")
            if sg == 3 and n + NR < 60: gload(n + NR); continue
            if hold > 0: hold -= 1; continue
            budget = 8
            while extra and budget > 0:
                x = extra.pop(0)
                if x == 'BAR': p.barrier(); continue
                if x == 'GAP': hold = 4; break
                e(x)
                if x.startswith('ds_write'): hold = 1
                budget -= 20 if x.startswith('ds_write') else 4
    p.tag = 'p4tail'
    for x in extra + xw(4) + fin(2):
        if x == 'BAR': p.barrier()
        elif x != 'GAP': e(x)

def gen_k4(p, end_label):
    e = p.e
    p.tag = 'k4'
    e("s_cmp_ge_u32 s2, 256")
    e(f"s_cbranch_scc1 {end_label}")
    e("s_load_dwordx4 s[4:7], s[0:1], 64")
    e("s_load_dwordx2 s[8:9], s[0:1], 80")
    e("s_load_dwordx2 s[14:15], s[0:1], 96")
    e("v_lshrrev_b32 v1, 6, v0")
    e("v_and_b32 v0, 63, v0")
    e(f"v_readfirstlane_b32 s{sW}, v1")
    e(f"v_lshlrev_b32 v{vL16}, 4, v0")
    p4_ids(p); lw_base(p); p4_addr(p)
    srd(p, 28, 4, S*F*2)
    srd(p, 16, 14, WS_END)
    srd(p, 36, 6, S*2)
    srd(p, 72, 8, S*D*2)
    ht = p4_hdma(p)
    t1 = [p4_dma(p, q) for q in range(32)]
    p4_raddr(p)
    p4_pre(p, ht)
    t2 = []
    for st in range(8):
        p.wait_vm(t1[4*st+3])
        for x in p4_tr(st): e(x)
        if 1 <= st <= 4:
            p.wait_lg(p.lg_seq - 8)
            t2 += [p4_dma(p, 32+4*(st-1)+k) for k in range(4)]
    p4_main(p, t2)
```

```python
import sys
sys.path.insert(0, 'gen')
from common import *
import k1, p2, p34
NAME = "sequential_preLN__grouped_kv_mqa__mixer_token_mlp__prompt"
def build(verbose=False):
    ref = open(f"cdna_kernels/{NAME}.s.ref").read().split('\n')
    head = [l for l in ref if l.startswith(';') and '@launch' not in l and 'Override launch' not in l and 'Harness parses' not in l]
    ks = [("qkv_kernel", k1.gen_k1, 256, k1.K1_LDS, 256, 256), ("attn_kernel", p2.gen_k2, 256, p2.P2_LDS, 512, 256),
          ("mlp1_kernel", p34.gen_k3, 240, p34.P34_LDS, 512, 256), ("mlp2_kernel", p34.gen_k4, 256, p34.P34_LDS, 512, 256)]
    out = '\n'.join(head) + '\n'
    for n, g, grid, lds, nv, acc in ks:
        out += f"; @launch kernel={n} grid=({grid},1,1) block=(256,1,1) lds={lds}\n"
    out += '.amdgcn_target "amdgcn-amd-amdhsa--gfx950"\n.text\n'
    for n, g, grid, lds, nv, acc in ks:
        p = Prog(); g(p, f"L_end_{n}")
        out += kernel_head(n) + p.text() + f"L_end_{n}:\n    s_endpgm\n"
        if verbose:
            print(n, p.ninstr)
            for x in p.nops:
                if not x[2].endswith('lds'): print('   ', x)
    out += '.section .rodata,"a"\n'
    for n, g, grid, lds, nv, acc in ks:
        out += ".p2align 6\n" + kernel_desc(n, nv, acc)
    return out
if __name__ == "__main__":
    dst = sys.argv[1] if len(sys.argv) > 1 else f"cdna_kernels/{NAME}.s"
    open(dst, 'w').write(build(verbose=len(sys.argv) > 2))
```

```python
import re

REG_RE = re.compile(r'^(-?)(?:abs\()?([vas])(?:(\d+)|\[(\d+):(\d+)\])\)?$')

def regs_of(tok):
    tok = tok.strip()
    m = REG_RE.match(tok)
    if m:
        k = m.group(2)
        if m.group(3) is not None:
            return [(k, int(m.group(3)))]
        return [(k, i) for i in range(int(m.group(4)), int(m.group(5)) + 1)]
    if tok == 'vcc': return [('s', 'vcc')]
    if tok in ('vcc_lo', 'vcc_hi'): return [('s', 'vcc')]
    if tok in ('exec', 'exec_lo', 'exec_hi'): return [('s', 'exec')]
    if tok == 'm0': return [('s', 'm0')]
    return []

def vr(base, n=1, k='v'):
    return f"{k}{base}" if n == 1 else f"{k}[{base}:{base+n-1}]"
def ar(base, n=1): return vr(base, n, 'a')
def sr(base, n=1): return vr(base, n, 's')

TRANS = ('v_exp_f32', 'v_log_f32', 'v_rcp_f32', 'v_rsq_f32', 'v_sqrt_f32', 'v_sin_f32', 'v_cos_f32')

def passes(op):
    if '32x32x4_2b' in op: return 16
    if '32x32x' in op: return 8
    if '16x16x' in op: return 4
    raise ValueError(op)

class Ins:
    __slots__ = ('text', 'op', 'kind', 'w', 'r', 'srcc', 'ab', 'dpp', 'data')
    def __init__(self, text):
        self.text = text
        t = text.split(';')[0].strip()
        parts = t.split(None, 1)
        self.op = op = parts[0]
        rest = parts[1] if len(parts) > 1 else ''
        toks = []
        for c in rest.split(','):
            c = c.strip()
            if not c: continue
            toks.append(c.split()[0])
        mods = rest
        self.w = []; self.r = []; self.srcc = []; self.ab = []; self.data = []
        self.dpp = ('quad_perm' in mods or 'row_' in mods or 'wave_' in mods)
        R = lambda i: regs_of(toks[i]) if i < len(toks) else []
        if op.startswith('v_mfma'):
            self.kind = 'mfma'; self.w = R(0); self.ab = R(1) + R(2); self.srcc = R(3); self.r = self.ab + self.srcc
        elif op.startswith('v_smfmac'):
            self.kind = 'mfma'; self.w = R(0); self.ab = R(1) + R(2) + R(3); self.srcc = R(0); self.r = self.ab + self.srcc
        elif op.startswith('v_'):
            self.kind = 'valu'
            self.w = R(0)
            for i in range(1, len(toks)): self.r += R(i)
            if op.startswith('v_permlane'):
                self.w = R(0) + R(1); self.r = R(0) + R(1)
            if op.startswith(('v_fmac', 'v_dot2c', 'v_writelane', 'v_pk_fmac')) or self.dpp or 'UNUSED_PRESERVE' in mods:
                self.r += R(0)
            if op.startswith(('v_add_co', 'v_sub_co', 'v_addc_co', 'v_subb_co')):
                self.w = R(0) + R(1); self.r = []
                for i in range(2, len(toks)): self.r += R(i)
            if op.startswith('v_cmpx'): self.w += [('s', 'exec')]
        elif op.startswith(('buffer_load', 'global_load')):
            self.kind = 'vmem'
            if re.search(r'\blds\b', mods) or '_lds_' in op:
                for i in range(len(toks)): self.r += R(i)
                self.r += [('s', 'm0')]
            else:
                self.w = R(0)
                for i in range(1, len(toks)): self.r += R(i)
        elif op.startswith(('buffer_store', 'global_store', 'buffer_atomic', 'global_atomic')):
            self.kind = 'vmem'
            for i in range(len(toks)): self.r += R(i)
            if op.endswith(('x3', 'x4')):
                self.data = R(0) if op.startswith('buffer') else R(1)
        elif op.startswith(('buffer_inv', 'buffer_wbl2')):
            self.kind = 'vmem'
        elif op.startswith('ds_'):
            self.kind = 'ds'
            if op.startswith(('ds_read', 'ds_bpermute', 'ds_permute', 'ds_swizzle')):
                self.w = R(0)
                for i in range(1, len(toks)): self.r += R(i)
            else:
                for i in range(len(toks)): self.r += R(i)
        elif op.startswith(('s_load', 's_memtime', 's_memrealtime', 's_buffer_load')):
            self.kind = 'smem'; self.w = R(0)
            for i in range(1, len(toks)): self.r += R(i)
        elif op in ('s_nop', 's_waitcnt', 's_barrier', 's_endpgm', 's_setprio', 's_sleep') or op.startswith(('s_branch', 's_cbranch')):
            self.kind = 'ctl'
        elif op.startswith('s_'):
            self.kind = 'salu'
            if op.startswith(('s_cmp', 's_bitcmp')):
                for i in range(len(toks)): self.r += R(i)
            else:
                self.w = R(0)
                for i in range(1, len(toks)): self.r += R(i)
                if 'saveexec' in op: self.w += [('s', 'exec')]
        else:
            raise ValueError("unknown op: " + text)

WS_D_USE = {4: 8, 8: 12, 16: 20}
WS_D_C_OVL = {4: 6, 8: 10, 16: 18}
WS_C_WAR = {4: 3, 8: 7, 16: 15}

class Prog:
    def __init__(self):
        self.lines = []
        self.hist = []
        self.vm_seq = 0; self.vm_done = 0
        self.lg_seq = 0; self.lg_done = 0
        self.pend = {}
        self.smem_out = False
        self.nops = []
        self.tag = ''
        self.ninstr = 0
        self.stampreg = 16

    def raw(self, s): self.lines.append(s)
    def comment(self, s): self.lines.append('    ; ' + s)
    def _put(self, text, states=1, ins=None):
        self.lines.append('    ' + text)
        self.hist.append((ins or Ins(text), states))
        self.ninstr += 1
        if len(self.hist) > 40: self.hist.pop(0)

    def wait_vm(self, tok):
        if tok is None or tok <= self.vm_done: return
        n = min(self.vm_seq - tok, 63)
        self._put(f"s_waitcnt vmcnt({n})")
        self.vm_done = self.vm_seq - n
    def wait_lg(self, tok):
        if tok is None or tok <= self.lg_done: return
        n = 0 if self.smem_out else min(self.lg_seq - tok, 15)
        self._put(f"s_waitcnt lgkmcnt({n})")
        self.lg_done = self.lg_seq - n
        if n == 0: self.smem_out = False
    def wait_all(self, vm=True, lg=True):
        if vm and lg:
            self._put("s_waitcnt vmcnt(0) lgkmcnt(0)")
        elif vm: self._put("s_waitcnt vmcnt(0)")
        elif lg: self._put("s_waitcnt lgkmcnt(0)")
        if vm: self.vm_done = self.vm_seq
        if lg: self.lg_done = self.lg_seq; self.smem_out = False
    def barrier(self, lg=True):
        if lg: self.wait_lg(self.lg_seq)
        self._put("s_barrier")
    def fence(self, n=20):
        self.wait_all()
        while n > 0:
            k = min(n, 16); self._put(f"s_nop {k-1}", k); n -= k
    def label(self, name):
        self.lines.append(name + ':')

    def need_states(self, ins):
        need = 0; dist = 0
        rs = set(ins.r); ws = set(ins.w)
        for prev, st in reversed(self.hist):
            pw = set(prev.w)
            req = 0
            if prev.kind == 'valu':
                vw = {x for x in pw if x[0] in 'va'}
                sw = {x for x in pw if x[0] == 's'}
                if ins.kind == 'mfma':
                    if vw & rs: req = max(req, 2)
                    if ('s', 'exec') in sw: req = max(req, 4)
                if ins.kind == 'valu':
                    if prev.op.startswith(TRANS) and (vw & rs): req = max(req, 1)
                    if ins.dpp and (vw & rs): req = max(req, 2)
                    if ins.dpp and ('s', 'exec') in sw: req = max(req, 5)
                    if ins.op.startswith('v_permlane') and (vw & rs): req = max(req, 2)
                    if ins.op.startswith(('v_readlane', 'v_readfirstlane')) and (vw & rs): req = max(req, 1)
                    if sw & rs: req = max(req, 4 if ins.op.startswith(('v_readlane', 'v_writelane')) else 2)
                    if ('sdwa' in prev.op or 'op_sel' in prev.text) and not prev.op.startswith('v_pk') and (vw & (rs | ws)): req = max(req, 1)
                    if prev.op.startswith('v_dot2') and (vw & (rs | ws)):
                        same = ins.op == prev.op and not (vw & set(ins.r[:-1] if ins.op.startswith('v_dot2c') else ins.r[:2]))
                        if not same: req = max(req, 3)
                if ins.kind in ('vmem', 'ds', 'mfma') and prev.op.startswith('v_dot2') and (vw & rs): req = max(req, 3)
                if ins.kind == 'vmem' and (sw & rs): req = max(req, 5)
                if ins.kind in ('salu', 'smem') and (sw & rs): req = max(req, 1)
            elif prev.kind == 'mfma':
                P = passes(prev.op)
                if ins.kind == 'mfma':
                    if pw & set(ins.ab): req = max(req, WS_D_USE[P])
                    cset = set(ins.srcc) | ws
                    if pw & cset:
                        exact = (prev.w == ins.srcc) and passes(ins.op) == P
                        if not exact: req = max(req, WS_D_C_OVL[P])
                elif ins.kind in ('valu', 'vmem', 'ds'):
                    if pw & (rs | ws): req = max(req, WS_D_USE[P])
                    if set(prev.srcc) & ws: req = max(req, WS_C_WAR[P])
            elif prev.kind == 'salu':
                if ('s', 'm0') in pw and ('s', 'm0') in rs and ins.kind in ('vmem', 'ds'): req = max(req, 1)
            elif prev.kind == 'vmem':
                if prev.data and (set(prev.data) & ws): req = max(req, 2)
            need = max(need, req - dist)
            dist += st
            if dist > 24: break
        return need

    def e(self, text):
        ins = Ins(text)
        vm = lg = None
        for x in set(ins.r) | set(ins.w):
            p = self.pend.get(x)
            if p:
                if p[0] == 'vm' and p[1] > self.vm_done: vm = max(vm or 0, p[1])
                if p[0] == 'lg' and p[1] > self.lg_done: lg = max(lg or 0, p[1])
        self.wait_vm(vm); self.wait_lg(lg)
        n = self.need_states(ins)
        if n > 0:
            self.nops.append((self.tag, n, text))
            while n > 0:
                k = min(n, 16); self._put(f"s_nop {k-1}", k); n -= k
        st = 1
        if ins.op == 's_nop': st = int(text.split()[1]) + 1
        self._put(text, st, ins)
        if ins.kind == 'vmem':
            self.vm_seq += 1
            for x in ins.w: self.pend[x] = ('vm', self.vm_seq)
            return self.vm_seq
        if ins.kind in ('ds', 'smem'):
            self.lg_seq += 1
            if ins.kind == 'smem': self.smem_out = True
            for x in ins.w: self.pend[x] = ('lg', self.lg_seq)
            return self.lg_seq
        return None

    def prewait(self, text):
        ins = Ins(text)
        vm = lg = None
        for x in set(ins.r) | set(ins.w):
            p = self.pend.get(x)
            if p:
                if p[0] == 'vm' and p[1] > self.vm_done: vm = max(vm or 0, p[1])
                if p[0] == 'lg' and p[1] > self.lg_done: lg = max(lg or 0, p[1])
        if vm and lg and not self.smem_out:
            a = min(self.vm_seq - vm, 63); b = min(self.lg_seq - lg, 15)
            self._put(f"s_waitcnt vmcnt({a}) lgkmcnt({b})")
            self.vm_done = self.vm_seq - a; self.lg_done = self.lg_seq - b
        else:
            self.wait_vm(vm); self.wait_lg(lg)

    def em(self, *texts):
        for t in texts:
            for l in t.strip().split('\n'):
                l = l.strip()
                if l: self.e(l)

    def text(self): return '\n'.join(self.lines) + '\n'
```

```python
from asmlib import *
S, D, H, DH, F = 2048, 640, 32, 20, 1536
QF  = 0
KFM = QF + 256*8*1280
KFE = KFM + 65536
VF  = KFE + 16384
WF  = VF + 128*768
HTP = WF + 819200
HT  = HTP + 20*256*512
GF  = HT + 20*256*512
FL2 = GF + 40*48*1024
FL3 = FL2 + 32768
WS_END = FL3 + 32768
LOG2E = 1.4426950408889634
QSCALE = DH ** -0.5 * LOG2E
EPS = 1e-5
import struct
def f32(x): return "0x%08x" % struct.unpack('<I', struct.pack('<f', x))[0]
def srd(p, d, base, nbytes, off=0):
    if off:
        p.e(f"s_add_u32 s{d}, s{base}, {off}")
        p.e(f"s_addc_u32 s{d+1}, s{base+1}, 0")
    else:
        p.e(f"s_mov_b32 s{d}, s{base}")
        p.e(f"s_mov_b32 s{d+1}, s{base+1}")
    p.e(f"s_mov_b32 s{d+2}, {nbytes}")
    p.e(f"s_mov_b32 s{d+3}, 0x20000")
STAMP = False
STAMP_OFF = 16 << 20
def stamp(p, idx):
    import common
    if not common.STAMP: return
    p.wait_lg(p.lg_seq)
    p.e(f"s_memrealtime s[92:93]")
    p.e(f"s_memtime s[94:95]")
    p.wait_lg(p.lg_seq)
    p.e(f"v_writelane_b32 v{p.stampreg}, s92, {2*idx}")
    p.e(f"v_writelane_b32 v{p.stampreg}, s94, {2*idx+1}")
def stamp_flush(p, kidx):
    import common
    if not common.STAMP: return
    e = p.e
    e("s_mov_b64 exec, -1")
    e("s_load_dwordx2 s[92:93], s[0:1], 96")
    e("s_lshl_b32 s3, s2, 2")
    e("s_add_u32 s3, s3, s40")
    e("s_lshl_b32 s3, s3, 8")
    e(f"s_add_u32 s3, s3, {STAMP_OFF + kidx*(1<<18)}")
    e("v_lshl_add_u32 v21, v0, 2, s3")
    e(f"global_store_dword v21, v{p.stampreg}, s[92:93]")
def kernel_head(name):
    return f".globl {name}\n.p2align 8\n.type {name},@function\n{name}:\n"
def kernel_desc(name, nv, acc):
    return f""".amdhsa_kernel {name}
  .amdhsa_next_free_vgpr {nv}
  .amdhsa_next_free_sgpr 96
  .amdhsa_accum_offset {acc}
  .amdhsa_group_segment_fixed_size 0
  .amdhsa_kernarg_size 104
  .amdhsa_user_sgpr_count 2
  .amdhsa_user_sgpr_kernarg_segment_ptr 1
  .amdhsa_system_sgpr_workgroup_id_x 1
.end_amdhsa_kernel
"""
assert all((u*205) >> 11 == u//10 for u in range(1024))
assert all((u*205) >> 12 == u//20 for u in range(1024))
if __name__ == "__main__":
    for n in "QF KFM KFE VF WF HTP HT GF WS_END".split(): print(n, globals()[n], hex(globals()[n]))
```

```python
from common import *
L_KV = 0; L_WO = 10240; L_ONES = 14336; L_CS = 14848
L_SLOT = 16384; SLOT = 36864
K1_LDS = L_SLOT + 4*SLOT
assert K1_LDS <= 163840

def gen_k1(p, end_label):
    p.tag = 'k1'; p.stampreg = 31
    e = p.e
    e("s_cmp_ge_u32 s2, 256")
    e(f"s_cbranch_scc1 {end_label}")
    stamp(p, 0)
    e("s_load_dwordx8 s[4:11], s[0:1], 0")
    e("s_load_dwordx2 s[12:13], s[0:1], 32")
    e("s_load_dwordx2 s[14:15], s[0:1], 96")
    sW, sRB, sCB = 40, 41, 42
    e("v_lshrrev_b32 v1, 6, v0")
    e("v_and_b32 v0, 63, v0")
    e(f"v_readfirstlane_b32 s{sW}, v1")
    e("s_and_b32 s3, s2, 7")
    e("s_lshr_b32 s43, s2, 3")
    e("s_lshr_b32 s44, s3, 1")
    e("s_lshl_b32 s44, s44, 3")
    e("s_and_b32 s45, s43, 7")
    e(f"s_add_u32 s{sRB}, s44, s45")
    e("s_and_b32 s44, s3, 1")
    e("s_lshl_b32 s44, s44, 2")
    e("s_lshr_b32 s45, s43, 3")
    e(f"s_add_u32 s{sCB}, s44, s45")
    vXS, vKVS, vWOS = 2, 3, 4
    vWS = [5, 6, 7, 8, 9]
    e("v_lshrrev_b32 v10, 2, v0")
    e("v_lshrrev_b32 v11, 5, v0")
    e("v_lshlrev_b32 v11, 1, v11")
    e("v_xor_b32 v11, v11, v0")
    e("v_and_b32 v11, 3, v11")
    e("v_lshlrev_b32 v11, 4, v11")
    e(f"s_lshl_b32 s44, s{sRB}, 2")
    e(f"s_add_u32 s44, s44, s{sW}")
    e("s_mul_i32 s45, s44, 20480")
    e("v_mul_u32_u24 v10, 1280, v10")
    e(f"v_add3_u32 v{vXS}, v10, v11, s45")
    sK = [46, 47, 48, 49]
    for i in range(4):
        e(f"s_add_u32 s{sK[i]}, s{sW}, {i}")
        e(f"s_and_b32 s{sK[i]}, s{sK[i]}, 3")
        e(f"s_lshl_b32 s{sK[i]}, s{sK[i]}, 6")
    def klocal(dst, rho, t):
        e(f"v_bfe_u32 v{t}, v{rho}, 2, 2")
        e(f"v_and_b32 v{dst}, 3, v{rho}")
        e(f"v_lshl_add_u32 v{dst}, v{t}, 3, v{dst}")
        e(f"v_bfe_u32 v{t}, v{rho}, 4, 1")
        e(f"v_lshl_add_u32 v{dst}, v{t}, 2, v{dst}")
    e(f"s_mul_i32 s45, s{sW}, {32*1280}")
    e(f"s_mul_i32 s50, s{sCB}, 160")
    e("s_add_u32 s45, s45, s50")
    for q in range(5):
        e(f"v_add_u32 v10, {64*q}, v0")
        e("v_mul_u32_u24 v11, 205, v10")
        e("v_lshrrev_b32 v11, 11, v11")
        e("v_mul_u32_u24 v12, 10, v11")
        e("v_sub_u32 v10, v10, v12")
        klocal(12, 11, 13)
        e("v_mul_u32_u24 v12, 1280, v12")
        e("v_lshl_add_u32 v12, v10, 4, v12")
        e(f"v_add_u32 v{vWS[q]}, s45, v12")
    sPair = 51
    e(f"s_cmp_ge_u32 s{sCB}, 3")
    e("s_cselect_b32 s50, 3, 0")
    e(f"s_sub_u32 s{sPair}, s{sCB}, s50")
    klocal(12, 0, 13)
    e("v_mul_u32_u24 v12, 40, v12")
    e(f"s_mul_i32 s45, s{sW}, {32*40}")
    e(f"s_lshl_b32 s50, s{sPair}, 4")
    e("s_add_u32 s45, s45, s50")
    e(f"v_add_u32 v{vKVS}, s45, v12")
    sK32, sCG = 52, 53
    e("s_mul_i32 s50, s2, 205")
    e(f"s_lshr_b32 s{sK32}, s50, 11")
    e(f"s_mul_i32 s50, s{sK32}, 10")
    e(f"s_sub_u32 s{sCG}, s2, s50")
    e(f"s_lshl_b32 s50, s{sK32}, 2")
    e(f"s_add_u32 s50, s50, s{sW}")
    e(f"s_mul_i32 s50, s50, {8*1280}")
    e(f"s_lshl_b32 s45, s{sCG}, 7")
    e("s_add_u32 s45, s45, s50")
    e("v_lshrrev_b32 v10, 3, v0")
    e("v_mul_u32_u24 v10, 1280, v10")
    e("v_and_b32 v11, 7, v0")
    e("v_lshlrev_b32 v11, 4, v11")
    e(f"v_add3_u32 v{vWOS}, v10, v11, s45")
    sXb, sWb, sKVb, sWOb = 54, 55, 56, 57
    e(f"s_lshl_b32 s{sXb}, s{sW}, 12")
    e(f"s_mul_i32 s{sWb}, s{sW}, 5120")
    e(f"s_lshl_b32 s{sKVb}, s{sW}, 9")
    e(f"s_lshl_b32 s{sWOb}, s{sW}, 10")
    srd(p, 16, 4, S*D*2)
    srd(p, 20, 6, D*D*2)
    e(f"s_cmp_ge_u32 s{sCB}, 3")
    e("s_cselect_b32 s24, s10, s8")
    e("s_cselect_b32 s25, s11, s9")
    e(f"s_mov_b32 s26, {D*DH*2}")
    e("s_mov_b32 s27, 0x20000")
    srd(p, 28, 12, D*D*2)
    toks = {}
    def issue_chunk(ch):
        sl = L_SLOT + (ch % 4)*SLOT
        e(f"s_mov_b32 s58, {ch*128*1280}")
        e(f"s_mov_b32 s59, {ch*128*40}")
        for q in range(5):
            if q < 4:
                e(f"s_add_u32 m0, s{sXb}, {sl + q*1024 - ch*256}")
                e(f"buffer_load_dwordx4 v{vXS}, s[16:19], s{sK[q]} offen offset:{ch*256} lds")
            e(f"s_add_u32 m0, s{sWb}, {sl + 16384 + q*1024}")
            e(f"buffer_load_dwordx4 v{vWS[q]}, s[20:23], s58 offen lds")
        e(f"s_add_u32 m0, s{sKVb}, {L_KV + ch*2048}")
        e("s_mov_b32 exec_hi, 0")
        toks[ch] = e(f"buffer_load_dwordx4 v{vKVS}, s[24:27], s59 offen lds")
        e("s_mov_b32 exec_hi, -1")
    stamp(p, 1)
    issue_chunk(0)
    e(f"s_add_u32 m0, s{sWOb}, {L_WO}")
    e(f"buffer_load_dwordx4 v{vWOS}, s[28:31], 0 offen lds")
    issue_chunk(1); issue_chunk(2); issue_chunk(3)
    srd(p, 32, 14, WF)
    srd(p, 36, 14, 819200, WF)
    srd(p, 60, 14, 65536, FL2)
    e("s_lshl_b32 s50, s2, 8")
    e("v_lshlrev_b32 v20, 2, v0")
    e("v_mov_b32 v21, 0")
    e("buffer_store_dword v21, v20, s[60:63], s50 offen")
    vWR = [10, 11, 12, 13]; vKR = [14, 15, 16, 17]; vXR = 18; vKinc = 19
    for i in range(4):
        e(f"s_mul_i32 s50, s{sK[i]}, 80")
        e(f"s_add_u32 s50, s50, {L_SLOT + 16384}")
        e(f"v_mad_u32_u24 v{vWR[i]}, v0, 40, s50")
    e("v_lshrrev_b32 v20, 2, v0")
    e("v_lshlrev_b32 v20, 4, v20")
    e("v_and_b32 v21, 1, v0")
    e("v_lshl_add_u32 v20, v21, 3, v20")
    e("v_and_b32 v21, 2, v0")
    e("v_cmp_eq_u32 vcc, 0, v21")
    e(f"v_mov_b32 v22, {L_ONES}")
    for i in range(4):
        e(f"s_lshl_b32 s50, s{sK[i]}, 3")
        e(f"v_add_u32 v21, s50, v20")
        e(f"v_cndmask_b32 v{vKR[i]}, v22, v21, vcc")
    e("v_mov_b32 v21, 2048")
    e(f"v_cndmask_b32 v{vKinc}, 0, v21, vcc")
    e("v_and_b32 v20, 15, v0")
    e("v_lshrrev_b32 v21, 3, v20")
    e("v_lshlrev_b32 v21, 1, v21")
    e("v_lshrrev_b32 v22, 4, v0")
    e("v_xor_b32 v21, v21, v22")
    e("v_lshlrev_b32 v21, 4, v21")
    e("v_lshl_add_u32 v20, v20, 6, v21")
    e(f"s_add_u32 s50, s{sXb}, {L_SLOT}")
    e(f"v_add_u32 v{vXR}, s50, v20")
    ACC = 32; CSA = 56; SQ = 60; SEL = 64; FA = [96, 128]
    e("v_mov_b32 v20, 0x3f803f80")
    e("v_mov_b32 v21, 0x3f803f80")
    e(f"v_mov_b32 v22, {L_ONES}")
    e("ds_write_b64 v22, v[20:21]")
    e("ds_write_b64 v22, v[20:21] offset:256")
    e("v_and_b32 v23, 15, v0")
    for t in range(6):
        e(f"v_cmp_eq_u32 vcc, {t}, v23")
        e(f"v_cndmask_b32 v{SEL+4*t}, 0, v20, vcc")
        for r in range(1, 4): e(f"v_mov_b32 v{SEL+4*t+r}, v{SEL+4*t}")
    for r in range(4): e(f"v_mov_b32 v{SQ+r}, 0")

    def reads(n):
        ch, i = n // 4, n % 4
        fa = FA[n % 2]
        out = [f"ds_read_b128 {vr(fa+24, 4)}, v{vXR} offset:{i*1024}"]
        for t in range(5):
            for hh in range(2):
                out.append(f"ds_read_b64_tr_b16 {vr(fa+4*t+2*hh, 2)}, v{vWR[i]} offset:{hh*2560 + 8*t}")
        for hh in range(2):
            out.append(f"ds_read_b64_tr_b16 {vr(fa+20+2*hh, 2)}, v{vKR[i]} offset:{hh*256}")
        return out
    def advance(ch, i):
        d = SLOT if ch < 3 else -3*SLOT
        out = [f"v_add_u32 v{vWR[i]}, {d}, v{vWR[i]}", f"v_add_u32 v{vKR[i]}, v{vKinc}, v{vKR[i]}"]
        if i == 3: out.append(f"v_add_u32 v{vXR}, {d}, v{vXR}")
        return out
    stamp(p, 2)
    p.wait_vm(toks[0]); p.barrier()
    stamp(p, 3)
    for r in reads(0): e(r)
    for n in range(20):
        ch, i = n // 4, n % 4
        fa = FA[n % 2]
        if n < 19:
            for a in advance(ch, i): e(a)
        if i == 3 and ch < 4:
            p.wait_vm(toks[ch+1]); p.barrier()
            if ch == 0:
                issue_chunk(4)
                e("v_lshrrev_b32 v20, 4, v0")
                e("v_bfe_u32 v21, v0, 2, 2")
                e("v_lshl_add_u32 v20, v20, 3, v21")
                e("v_lshlrev_b32 v20, 7, v20")
                e("v_and_b32 v21, 3, v0")
                e("v_lshl_add_u32 v20, v21, 3, v20")
                e(f"s_lshl_b32 s50, s{sW}, 5")
                e(f"v_add_u32 v20, s50, v20")
                e(f"ds_read_b64_tr_b16 v[24:25], v20 offset:{L_WO}")
                e(f"ds_read_b64_tr_b16 v[26:27], v20 offset:{L_WO + 512}")
                e(f"s_lshr_b32 s50, s{sK32}, 1")
                e("s_mul_i32 s50, s50, 40")
                e(f"s_lshl_b32 s45, s{sCG}, 2")
                e("s_add_u32 s50, s50, s45")
                e(f"s_add_u32 s50, s50, s{sW}")
                e("s_lshl_b32 s50, s50, 1")
                e(f"s_and_b32 s45, s{sK32}, 1")
                e("s_add_u32 s50, s50, s45")
                e("s_lshl_b32 s50, s50, 10")
                e("v_lshl_add_u32 v20, v0, 4, s50")
                e("buffer_store_dwordx4 v[24:27], v20, s[36:39], 0 offen")
        nxt = reads(n+1) if n < 19 else []
        mf = []
        for t in range(6):
            c = "0" if n == 0 else vr(ACC+4*t, 4)
            mf.append(f"v_mfma_f32_16x16x32_bf16 {vr(ACC+4*t, 4)}, {vr(fa+4*t, 4)}, {vr(fa+24, 4)}, {c}")
            if i == 0:
                c = "0" if (n == 0 and t == 0) else vr(CSA, 4)
                mf.append(f"v_mfma_f32_16x16x32_bf16 {vr(CSA, 4)}, {vr(fa+4*t, 4)}, {vr(SEL+4*t, 4)}, {c}")
        dots = [f"v_dot2c_f32_bf16 v{SQ+r}, v{fa+24+r}, v{fa+24+r}" for r in range(4)]
        p.wait_lg(p.lg_seq)
        k = 0
        for j, m in enumerate(mf):
            e(m)
            per = -(-len(nxt) // len(mf))
            for r in nxt[k:k+per]: e(r)
            k += per
            if j < 4: e(dots[j])
        if n == 17:
            e(f"s_add_u32 s50, s{sWOb}, {L_SLOT + SLOT}")
            e("v_lshl_add_u32 v20, v0, 4, s50")
            e(f"ds_write_b128 v20, {vr(CSA, 4)}")
        if n == 18:
            p.barrier()
            e(f"v_lshlrev_b32 v20, 4, v0")
            for w in range(4):
                e(f"ds_read_b128 {vr(160+4*w, 4)}, v20 offset:{L_SLOT + SLOT + 1024*w}")
    p.tag = 'k1e'
    stamp(p, 4)
    CS = 160
    for r in (0, 2):
        e(f"v_pk_add_f32 {vr(CS+r,2)}, {vr(CS+r,2)}, {vr(CS+4+r,2)}")
        e(f"v_pk_add_f32 {vr(CS+8+r,2)}, {vr(CS+8+r,2)}, {vr(CS+12+r,2)}")
    for r in (0, 2):
        e(f"v_pk_add_f32 {vr(CS+r,2)}, {vr(CS+r,2)}, {vr(CS+8+r,2)}")
    e(f"v_add_f32 v{SQ}, v{SQ}, v{SQ+1}")
    e(f"v_add_f32 v{SQ+2}, v{SQ+2}, v{SQ+3}")
    e(f"v_add_f32 v{SQ}, v{SQ}, v{SQ+2}")
    e(f"v_mov_b32 v{SQ+1}, v{SQ}")
    e(f"v_mov_b32 v20, v{ACC+20}")
    e(f"v_mov_b32 v21, v{ACC+20}")
    e(f"v_permlane32_swap_b32 v{SQ}, v{SQ+1}")
    e("v_permlane32_swap_b32 v20, v21")
    e(f"v_add_f32 v{SQ}, v{SQ}, v{SQ+1}")
    e(f"v_mov_b32 v{SQ+1}, v{SQ}")
    e(f"v_mul_f32 v21, {f32(-1.0/D)}, v21")
    e(f"v_permlane16_swap_b32 v{SQ}, v{SQ+1}")
    e(f"v_add_f32 v{SQ}, v{SQ}, v{SQ+1}")
    e(f"v_mul_f32 v{SQ}, {f32(1.0/D)}, v{SQ}")
    e(f"v_fma_f32 v{SQ}, -v21, v21, v{SQ}")
    e(f"v_max_f32 v{SQ}, 0, v{SQ}")
    e(f"v_add_f32 v{SQ}, {f32(EPS)}, v{SQ}")
    e(f"v_rsq_f32 v22, v{SQ}")
    for t in range(6):
        for r in range(4):
            e(f"v_fmac_f32_dpp v{ACC+4*t+r}, v{CS+r}, v21 row_newbcast:{t} row_mask:0xf bank_mask:0xf")
    e(f"v_mul_f32 v24, {f32(QSCALE)}, v22")
    for t in range(6):
        m = "v[24:25]" if t < 5 else "v[22:23]"
        for r in (0, 2):
            e(f"v_pk_mul_f32 {vr(ACC+4*t+r,2)}, {vr(ACC+4*t+r,2)}, {m} op_sel_hi:[1,0]")
    O = 64
    for t in range(6):
        for r in (0, 2):
            e(f"v_cvt_pk_bf16_f32 v{O+2*t+r//2}, v{ACC+4*t+r}, v{ACC+4*t+r+1}")
    e("v_bfe_u32 v20, v0, 3, 1")
    e("v_mul_u32_u24 v20, 10240, v20")
    e("s_mul_i32 s50, s44, 20480")
    e(f"s_mul_i32 s45, s{sCB}, 1280")
    e("s_add_u32 s50, s50, s45")
    e("v_lshrrev_b32 v21, 4, v0")
    e("v_and_b32 v22, 7, v0")
    e("v_lshl_add_u32 v21, v21, 3, v22")
    e("v_lshl_add_u32 v22, v21, 4, v20")
    e("v_lshl_add_u32 v23, v21, 3, v20")
    e(f"buffer_store_dwordx4 {vr(O,4)}, v22, s[32:35], s50 offen")
    e(f"buffer_store_dwordx4 {vr(O+4,4)}, v22, s[32:35], s50 offen offset:512")
    e(f"buffer_store_dwordx2 {vr(O+8,2)}, v23, s[32:35], s50 offen offset:1024")
    stamp(p, 5); stamp_flush(p, 0)
    e("v_and_b32 v20, 15, v0")
    e("s_lshl_b32 s45, s44, 4")
    e("v_add_u32 v20, s45, v20")
    e("v_lshrrev_b32 v21, 4, v0")
    e(f"s_cmp_ge_u32 s{sCB}, 6")
    e(f"s_cbranch_scc1 {end_label}")
    e(f"s_cmp_ge_u32 s{sCB}, 3")
    e("s_cbranch_scc1 L_k1_v")
    e(f"s_cmp_eq_u32 s{sCB}, 2")
    e("s_cbranch_scc1 L_k1_ke")
    e("v_lshrrev_b32 v22, 5, v20")
    e("v_lshlrev_b32 v22, 10, v22")
    e("v_and_b32 v23, 31, v20")
    e("v_lshl_add_u32 v22, v23, 4, v22")
    e("v_lshl_add_u32 v22, v21, 3, v22")
    e(f"s_lshl_b32 s50, s{sPair}, 9")
    e(f"s_add_u32 s50, s50, {KFM}")
    e("s_mov_b32 exec_hi, 0")
    e(f"buffer_store_dwordx2 {vr(O+10,2)}, v22, s[32:35], s50 offen")
    e("s_endpgm")
    p.label("L_k1_ke")
    e("v_lshrrev_b32 v22, 7, v20")
    e("v_lshlrev_b32 v22, 10, v22")
    e("v_and_b32 v23, 63, v20")
    e("v_lshl_add_u32 v22, v23, 4, v22")
    e("v_bfe_u32 v23, v20, 6, 1")
    e("v_lshl_add_u32 v22, v23, 3, v22")
    e(f"s_mov_b32 s50, {KFE}")
    e("s_mov_b32 exec_hi, 0")
    e("s_mov_b32 exec_lo, 0xffff")
    e(f"buffer_store_dwordx2 {vr(O+10,2)}, v22, s[32:35], s50 offen")
    e("s_endpgm")
    p.label("L_k1_v")
    e(f"s_lshl_b32 s45, s{sPair}, 1")
    e("v_add_u32 v21, s45, v21")
    e("v_cmp_eq_u32 vcc, 5, v21")
    e("v_mov_b32 v23, 0x3f80")
    e(f"v_cndmask_b32 v{O+10}, v{O+10}, v23, vcc")
    e("v_mov_b32 v23, 0")
    e(f"v_cndmask_b32 v{O+11}, v{O+11}, v23, vcc")
    e("v_lshrrev_b32 v22, 3, v20")
    e("v_mul_u32_u24 v22, 384, v22")
    e("v_lshl_add_u32 v22, v21, 6, v22")
    e("v_and_b32 v23, 7, v20")
    e("v_lshl_add_u32 v22, v23, 1, v22")
    e(f"s_mov_b32 s50, {VF}")
    e("s_mov_b32 exec_hi, 0")
    e(f"buffer_store_short v{O+10}, v22, s[32:35], s50 offen")
    e(f"buffer_store_short_d16_hi v{O+10}, v22, s[32:35], s50 offen offset:16")
    e(f"buffer_store_short v{O+11}, v22, s[32:35], s50 offen offset:32")
    e(f"buffer_store_short_d16_hi v{O+11}, v22, s[32:35], s50 offen offset:48")
```

```python
from common import *
import p2, p34
from p2 import *
from p34 import *
OPT = set()

def poll(p, name, vaddr, soff, want):
    e = p.e
    e("s_mov_b32 s54, 0x40000")
    p.label(name)
    p._put(f"buffer_load_dword v20, v{vaddr}, s[16:19], s{soff} offen sc1")
    p._put("s_sub_u32 s54, s54, 1")
    p._put(f"s_cbranch_scc1 {name}_out")
    p._put("s_waitcnt vmcnt(0)")
    p._put(f"v_cmp_ne_u32 vcc, {want}, v20")
    p._put("s_nop 1")
    p._put(f"s_cbranch_vccnz {name}")
    p.label(name + "_out")
    p.wait_all(vm=True, lg=False)

def signal(p, tok, soff):
    e = p.e
    p.wait_vm(tok)
    p.barrier(lg=False)
    e("v_mov_b32 v20, 1")
    e(f"buffer_store_dword v20, v29, s[16:19], s{soff} offen sc1")

def gen_main(p, end_label):
    e = p.e
    p.tag = 'main'
    e("s_cmp_ge_u32 s2, 256")
    e(f"s_cbranch_scc1 {end_label}")
    stamp(p, 0)
    e("s_load_dwordx2 s[4:5], s[0:1], 0")
    e("s_load_dwordx2 s[14:15], s[0:1], 96")
    e("s_load_dwordx8 s[76:83], s[0:1], 48")
    e("s_load_dwordx2 s[84:85], s[0:1], 80")
    e("v_cmp_eq_u32 vcc, 0, v0")
    e("v_lshrrev_b32 v1, 6, v0")
    e("v_bfrev_b32 v20, 1")
    e(f"v_readfirstlane_b32 s{sW}, v1")
    e("v_cndmask_b32 v29, v20, v0, vcc")
    e("v_and_b32 v0, 63, v0")
    e(f"s_mov_b32 s{sB}, s2")
    p2_setup(p)
    srd(p, 16, 14, WS_END)
    srd(p, 20, 4, S*D*2)
    t1 = []
    def pro():
        p3_ids(p); p4_ids(p); lw_base(p); p3_addr(p)
        srd(p, 24, 76, S*F*2)
        e("s_cmp_ge_u32 s2, 240")
        e("s_cselect_b32 s26, 0, s26")
        srd(p, 28, 80, S*F*2)
        srd(p, 32, 78, F*2)
        srd(p, 36, 82, S*2)
        srd(p, 72, 84, S*D*2)
        e(f"s_mul_i32 s50, s{sDB3}, 52")
        e(f"s_cmp_ge_u32 s{sDB3}, 5")
        e("s_cselect_b32 s51, 260, 0")
        e("s_sub_u32 s50, s50, s51")
        e("v_add_u32 v20, s50, v0")
        e("v_min_u32 v20, 255, v20")
        e(f"s_lshl_b32 s50, s{sW}, 9")
        e("s_add_u32 s50, s50, 256")
        e("v_add_u32 v20, s50, v20")
        e("v_mul_u32_u24 v20, 3072, v20")
        e(f"s_lshl_b32 s50, s{sFB3}, 7")
        e("v_add_u32 v30, s50, v20")
        e(f"s_and_b32 s50, s{sDB4}, 3")
        e("s_mul_i32 s50, s50, 96")
        e(f"s_mul_i32 s51, s{sW}, 384")
        e("s_add_u32 s50, s50, s51")
        e("v_min_u32 v20, 47, v0")
        e("v_add_u32 v20, s50, v20")
        e(f"s_lshl_b32 s50, s{sSB4}, 7")
        e("v_lshl_add_u32 v31, v20, 12, s50")
        e(f"s_mov_b32 s55, {48*4096}")
    hooks = {'pro': pro}
    q = 0
    for g in range(1, 5):
        for pp in range(8):
            hooks[(g, pp, 'A' if pp != 4 else 'D')] = (lambda q=q: t1.append(p3_dma(p, q))); q += 1
    if 'nopf' not in OPT:
        offs = (0, 64) if 'pf64' in OPT else (0,)
        def pf(txt): return lambda: [e(f"{txt} offset:{o}") for o in offs]
        hooks[(5, 0, 'A')] = pf("buffer_load_dword v26, v30, s[24:27], 0 offen")
        hooks[(5, 3, 'A')] = pf("buffer_load_dword v27, v31, s[28:31], 0 offen")
        hooks[(5, 6, 'A')] = pf("buffer_load_dword v25, v31, s[28:31], s55 offen")
    p2_main(p, False, hooks=hooks)
    e("s_cmp_lg_u32 s51, 0")
    if not p2.EXP: e("s_cbranch_scc1 L_p2_slow")
    p.label("L_p2_epi")
    htok = p2_epilogue(p, "sc1")
    stamp(p, 7)
    p.tag = 's2'
    p3_raddr(p)
    p.wait_vm(t1[-1])
    t2 = []
    for st_ in range(16):
        for x in p3_tr(st_): e(x)
        if st_ >= 2:
            p.wait_lg(p.lg_seq - 8)
            t2 += [p3_dma(p, 32+2*(st_-2)), p3_dma(p, 33+2*(st_-2))]
    p.wait_lg(p.lg_seq)
    t2 += [p3_dma(p, q) for q in range(60, 64)]
    e(f"s_lshl_b32 s56, s{sB}, 7")
    e(f"s_add_u32 s56, s56, {FL2}")
    signal(p, htok, 56)
    stamp(p, 8)
    p3_pre(p)
    p4_addr(p)
    e(f"s_lshl_b32 s56, s{sW}, 13")
    e(f"s_add_u32 s56, s56, {FL2}")
    e("v_lshlrev_b32 v21, 7, v0")
    poll(p, "L_s2", 21, 56, 1)
    e("s_cmp_ge_u32 s2, 240")
    e("s_cbranch_scc1 L_idle3")
    u1 = []
    gtok = p3_main(p, t2, "sc1", "sc1", after_loads=lambda i: u1.append(p4_dma(p, i)), sb=8)
    p.label("L_join3")
    stamp(p, 13)
    p.tag = 's3'
    p4_raddr(p)
    u2 = []
    for st_ in range(8):
        p.wait_vm(u1[4*st_+3])
        for x in p4_tr(st_): e(x)
        if 1 <= st_ <= 4:
            p.wait_lg(p.lg_seq - 8)
            u2 += [p4_dma(p, 32+4*(st_-1)+k) for k in range(4)]
    p.wait_lg(p.lg_seq)
    ht = p4_hdma(p, "sc1")
    e(f"s_mul_i32 s56, s{sDB3}, 24")
    e(f"s_add_u32 s56, s56, s{sFB3}")
    e("s_cmp_ge_u32 s2, 240")
    e("s_cselect_b32 s56, s2, s56")
    e("s_lshl_b32 s56, s56, 7")
    e(f"s_add_u32 s56, s56, {FL3}")
    e("v_cmp_eq_u32 vcc, 0, v0")
    e(f"s_cmp_eq_u32 s{sW}, 0")
    e("s_cselect_b64 vcc, vcc, 0")
    e("v_bfrev_b32 v20, 1")
    e("v_cndmask_b32 v25, v20, v0, vcc")
    p.wait_vm(gtok)
    p.barrier(lg=False)
    e("v_mov_b32 v20, 1")
    e("buffer_store_dword v20, v25, s[16:19], s56 offen sc1")
    stamp(p, 14)
    p4_pre(p, ht)
    e("v_min_u32 v20, 11, v0")
    e("v_cmp_lt_u32 vcc, 5, v20")
    e("v_add_u32 v21, 18, v20")
    e("v_cndmask_b32 v20, v20, v21, vcc")
    e("v_lshlrev_b32 v21, 7, v20")
    e(f"s_mul_i32 s56, s{sDB4}, 5")
    e("s_lshr_b32 s56, s56, 2")
    e("s_mul_i32 s56, s56, 24")
    e(f"s_mul_i32 s50, s{sW}, 6")
    e("s_add_u32 s56, s56, s50")
    e("s_lshl_b32 s56, s56, 7")
    e(f"s_add_u32 s56, s56, {FL3}")
    poll(p, "L_s3", 21, 56, 1)
    p4_main(p, u2, "sc1", sb=14)
    stamp(p, 19); stamp_flush(p, 1)
    e("s_endpgm")
    p.label("L_idle3")
    p.fence(); p.barrier()
    for q in range(32): p4_dma(p, q)
    p.fence()
    e("s_branch L_join3")
    p.label("L_p2_slow")
    p.fence(); p.barrier()
    p2_main(p, True)
    p.fence()
    e("s_branch L_p2_epi")
```

```python
from common import *
L2_X = 0; L2_OF = 12288; L2_ST = 22528; L2_FL = 23040; L2_DUM = 23104; L2_MX = 23552
P2_LDS = 24576
SB = [32, 64]; OB = [96, 112]; QM = [128, 134]; QE = [132, 138]
PA = 140; AF = [180, 184]; RT = 188
KM, KE, VV = 0, 64, 80
vL16, vIDX, vIDX16, vZ, vXW, vXR, vOW, vOI, vCHK, vQM, vQE, vVS = 1, 2, 3, 4, 6, 7, 8, 9, 10, 11, 12, 13
CB = 208
R_LO = 0x1f800000
R_HI = 0x5d800000
sW = 40; sB = 41

def p2_setup(p):
    e = p.e
    e(f"v_lshlrev_b32 v{vL16}, 4, v0")
    e(f"v_mov_b32 v{vIDX}, 0xdddd")
    e("v_and_b32 v20, 8, v0")
    e("v_cmp_eq_u32 vcc, 0, v20")
    e("v_mov_b32 v20, 0xeeee")
    e("v_mov_b32 v21, 0x4444")
    e(f"v_cndmask_b32 v{vIDX16}, v20, v21, vcc")
    e(f"v_mov_b32 v{vZ}, 0")
    e(f"v_mov_b32 v{vZ+1}, 0")
    e(f"s_mul_i32 s42, s{sB}, 10240")
    e(f"v_add_u32 v{vQM}, s42, v{vL16}")
    e("v_and_b32 v20, 31, v0")
    e(f"v_lshl_add_u32 v{vQE}, v20, 3, s42")
    e("v_min_u32 v20, 23, v20")
    e("v_lshrrev_b32 v21, 5, v0")
    e("v_mul_u32_u24 v21, 384, v21")
    e(f"v_lshl_add_u32 v{vVS}, v20, 4, v21")
    e(f"s_mul_i32 s43, s{sW}, 3072")
    e(f"v_add_u32 v{vXW}, s43, v{vL16}")
    e("v_and_b32 v20, 7, v0")
    e("v_lshlrev_b32 v21, 2, v20")
    e("s_mov_b32 s44, 0x54435210")
    e("v_lshrrev_b32 v21, v21, s44") if False else e("v_mov_b32 v22, s44")
    e("v_lshrrev_b32 v21, v21, v22")
    e("v_and_b32 v21, 7, v21")
    e("v_lshrrev_b32 v22, 3, v0")
    e(f"s_lshl_b32 s44, s{sW}, 7")
    e("v_lshl_add_u32 v23, v21, 9, s44")
    e(f"v_lshl_add_u32 v{vXR}, v22, 4, v23")

def p2_ow(p):
    e = p.e
    e("v_and_b32 v20, 7, v0")
    e("v_lshlrev_b32 v21, 2, v20")
    e("v_mov_b32 v22, 0x54435210")
    e("v_lshrrev_b32 v21, v21, v22")
    e("v_and_b32 v21, 7, v21")
    e("v_lshrrev_b32 v22, 3, v0")
    e(f"s_mul_i32 s44, s{sW}, 5")
    e("v_add_u32 v21, s44, v21")
    e("v_lshrrev_b32 v23, 2, v21")
    e("v_lshlrev_b32 v23, 8, v23")
    e("v_and_b32 v21, 3, v21")
    e("v_lshl_add_u32 v23, v21, 2, v23")
    e("v_lshl_add_u32 v23, v22, 4, v23")
    e(f"v_add_u32 v23, {L2_OF}, v23")
    e("v_lshrrev_b32 v21, v20, 0x37") if False else e("v_mov_b32 v21, 0x37")
    e("v_lshrrev_b32 v21, v20, v21")
    e("v_and_b32 v21, 1, v21")
    e("v_cmp_eq_u32 vcc, 1, v21")
    e(f"v_mov_b32 v22, {L2_DUM}")
    e(f"v_cndmask_b32 v{vOW}, v22, v23, vcc")
    e(f"v_mul_u32_u24 v{vOI}, 1280, v21")
    e(f"v_mov_b32 v{vCHK}, 0")

EXP = set()
def p2_main(p, slow, lf="", hooks=None):
    e = p.e
    hooks = hooks or {}
    p.tag = 'p2pro'
    e(f"s_mul_i32 s44, s{sW}, 320")
    e("s_add_u32 s44, s44, s42")
    xt = None
    for q in range(3):
        e(f"v_add_u32 v20, {64*q}, v0")
        e("v_mul_u32_u24 v21, 205, v20")
        e("v_lshrrev_b32 v21, 12, v21")
        e("v_mul_u32_u24 v21, 960, v21")
        e("v_lshl_add_u32 v21, v20, 4, v21")
        e(f"s_add_u32 m0, s43, {L2_X + 1024*q}")
        xt = e("buffer_load_dwordx4 v21, s[20:23], s44 offen lds")
    def loadq(g):
        e(f"s_mov_b32 s45, {QF + 1280*g}")
        e(f"buffer_load_dwordx4 {vr(QM[g%2],4)}, v{vQM}, s[16:19], s45 offen {lf}")
        e(f"buffer_load_dwordx2 {vr(QE[g%2],2)}, v{vQE}, s[16:19], s45 offen offset:1024 {lf}")
    loadq(0)
    e(f"s_lshl_b32 s46, s{sW}, 14")
    e(f"s_add_u32 s46, s46, {KFM}")
    e(f"s_lshl_b32 s47, s{sW}, 12")
    e(f"s_add_u32 s47, s47, {KFE}")
    e(f"s_mul_i32 s48, s{sW}, {32*768}")
    e(f"s_add_u32 s48, s48, {VF}")
    def loadk(pp):
        o = []
        if pp % 2 == 0:
            o.append(f"buffer_load_dwordx4 {ar(KE+2*pp,4)}, v{vL16}, s[16:19], s47 offen offset:{512*pp} {lf}")
        for t in range(2):
            o.append(f"buffer_load_dwordx4 {ar(KM+8*pp+4*t,4)}, v{vL16}, s[16:19], s46 offen offset:{2048*(pp%2) + 1024*t} {lf}")
        if pp % 2: o.append("s_add_u32 s46, s46, 4096")
        return o
    def loadv(pp):
        o = [f"buffer_load_dwordx4 {ar(VV+16*pp+4*u,4)}, v{vVS}, s[16:19], s48 offen offset:{768*u} {lf}" for u in range(4)]
        return o + ["s_add_u32 s48, s48, 3072"]
    if slow:
        for pp in range(8):
            for x in loadk(pp) + loadv(pp): e(x)
    else:
        for x in loadk(0) + loadk(1) + loadv(0) + loadk(2) + loadv(1): e(x)
    if 'pro' in hooks: hooks['pro']()
    p2_ow(p)
    e("v_bfe_u32 v20, v0, 2, 3")
    e("v_mul_u32_u24 v20, 320, v20")
    e("v_and_b32 v21, 3, v0")
    e("v_lshl_add_u32 v20, v21, 3, v20")
    e("v_add_u32 v20, s43, v20")
    e("v_cmp_gt_u32 vcc, 32, v0")
    e("v_mov_b32 v21, 0xffff0000")
    e("v_mov_b32 v22, 0x0c0c0c0c")
    e("v_mov_b32 v23, 0x01000c0c")
    e("v_cndmask_b32 v21, 0, v21, vcc")
    e("v_cndmask_b32 v22, v22, v23, vcc")
    p.wait_vm(xt)
    for t in range(10):
        e(f"ds_read_b64_tr_b16 {vr(SB[1]+2*t,2)}, v20 offset:{L2_X + 32*t}")
    for t in range(10):
        for r in range(2):
            s = SB[1] + 2*t + r
            e(f"v_perm_b32 v{PA+4*t+2*r}, v{s}, v{s}, v22")
            e(f"v_and_b32 v{PA+4*t+2*r+1}, v21, v{s}")
    ring = [('a', 208+8*i) for i in range(6)] + ([] if slow else [('v', 208+8*i) for i in range(6)])
    NR = len(ring)
    items = [(ks, t) for ks in range(10) for t in range(10)]
    def slot(n):
        if n >= 92: return ('a', KM + 8*(n-92))
        return ring[n % NR]
    st = dict(ld=0, mm=0, avail=0, ldk=92, afl=0)
    e(f"s_mul_i32 s49, s{sW}, 20480")
    e(f"s_add_u32 s49, s49, {WF}")
    def wload(n):
        ks, t = items[n]; k, b = slot(n)
        if 'nowload' in EXP: return
        sreg = 53 if n >= 92 else 50
        if n % 2 == 0 and st.get(('so', n)) is None: e(f"s_add_u32 s{sreg}, s49, {ks*81920 + t*2048}")
        e(f"buffer_load_dwordx4 {vr(b,4,k)}, v{vL16}, s[16:19], s{sreg} offen offset:{2048*(n%2)} {lf}")
        e(f"buffer_load_dwordx4 {vr(b+4,4,k)}, v{vL16}, s[16:19], s{sreg} offen offset:{2048*(n%2)+1024} {lf}")
    def try_wload():
        if st['ld'] < 92 and st['ld'] < st['mm'] + NR:
            wload(st['ld']); st['ld'] += 1; return True
        return False
    def pre_so():
        n = st['ld']
        if n < 92 and n % 2 == 0 and st.get(('so', n)) is None and 'nowload' not in EXP:
            ks, t = items[n]
            e(f"s_add_u32 s50, s49, {ks*81920 + t*2048}"); st[('so', n)] = 1
    def aload(ks):
        e(f"ds_read_b128 {vr(AF[ks%2],4)}, v{vL16} offset:{L2_OF + 1024*ks}")
    def try_aload():
        ks = st['afl']
        if ks*10 < st['avail'] and st['mm'] >= (ks-1)*10:
            aload(ks); st['afl'] += 1
    def next_sm16():
        n = st['mm']
        if n < min(st['afl']*10, 100) and (n < st['ld'] or (n >= 92 and n < st['ldk'])):
            ks, t = items[n]; k, b = slot(n)
            return f"v_smfmac_f32_16x16x64_bf16 {vr(PA+4*t,4)}, {vr(AF[ks%2],4)}, {vr(b,8,k)}, v{vIDX16}"
    def try_sm16():
        x = next_sm16()
        if x:
            if 'nosm16' not in EXP: e(x)
            st['mm'] += 1; return True
        return False
    def Xtext(P):
        g, pp = divmod(P, 8)
        c = vr(CB, 32) if slow else "0"
        return f"v_mfma_f32_32x32x4_2b_bf16 {vr(SB[P%2],32)}, {ar(KE+2*pp,2)}, {vr(QE[g%2],2)}, {c}"
    def X(P): e(Xtext(P))
    def M(P, t):
        g, pp = divmod(P, 8); d = vr(SB[P%2]+16*t, 16)
        e(f"v_mfma_f32_32x32x16_bf16 {d}, {ar(KM+8*pp+4*t,4)}, {vr(QM[g%2],4)}, {d}")
    def SM(P, u):
        g, pp = divmod(P, 8)
        e(f"v_smfmac_f32_32x32x32_bf16 {vr(OB[g%2],16)}, {ar(VV+16*pp+4*u,4)}, {vr(SB[P%2]+8*u,8)}, v{vIDX}")
    def zeroO(g):
        e(f"v_mfma_f32_32x32x8_bf16 {vr(OB[g%2],16)}, {vr(vZ,2)}, {vr(vZ,2)}, 0")
    def maxpass(g):
        b = SB[0]
        for pp in range(8):
            e(f"v_mfma_f32_32x32x4_2b_bf16 {vr(b,32)}, {ar(KE+2*pp,2)}, {vr(QE[g%2],2)}, 0")
            for t in range(2):
                d = vr(b+16*t, 16)
                e(f"v_mfma_f32_32x32x16_bf16 {d}, {ar(KM+8*pp+4*t,4)}, {vr(QM[g%2],4)}, {d}")
            if pp == 0: e(f"v_mov_b32 v24, v{b}")
            for r in range(0, 32, 2):
                e(f"v_max3_f32 v24, v24, v{b+r}, v{b+r+1}")
        e("v_mov_b32 v25, v24")
        e("v_permlane32_swap_b32 v24, v25")
        e("v_max_f32 v24, v24, v25")
        e(f"s_lshl_b32 s51, s{sW}, 2")
        e(f"v_add_u32 v25, s51, v{vL16}")
        p.barrier()
        e(f"ds_write_b32 v25, v24 offset:{L2_MX}")
        p.barrier()
        e(f"ds_read_b128 v[24:27], v{vL16} offset:{L2_MX}")
        e("v_max3_f32 v24, v24, v25, v26")
        e("v_max_f32 v24, v24, v27")
        for r in range(32): e(f"v_sub_f32 v{CB+r}, 0, v24")
    def xwrite(g, jq):
        e(f"ds_write_b128 v{vXW}, {vr(OB[g%2]+4*jq,4)} offset:{L2_X + 1024*jq}")
    def xread(w2):
        e(f"ds_read_b128 {vr(RT+4*w2,4)}, v{vXR} offset:{L2_X + 3072*w2}")
    def reduce_ops(packed):
        o = []
        if packed:
            o += [f"v_pk_add_f32 {vr(RT,2)}, {vr(RT,2)}, {vr(RT+4,2)}",
                  f"v_pk_add_f32 {vr(RT+8,2)}, {vr(RT+8,2)}, {vr(RT+12,2)}",
                  f"v_pk_add_f32 {vr(RT,2)}, {vr(RT,2)}, {vr(RT+8,2)}",
                  f"v_pk_add_f32 {vr(RT+2,2)}, {vr(RT+2,2)}, {vr(RT+6,2)}",
                  f"v_pk_add_f32 {vr(RT+10,2)}, {vr(RT+10,2)}, {vr(RT+14,2)}",
                  f"v_rcp_f32_dpp v{RT+4}, v{RT} quad_perm:[3,3,3,3] row_mask:0xf bank_mask:0xf",
                  f"v_pk_add_f32 {vr(RT+2,2)}, {vr(RT+2,2)}, {vr(RT+10,2)}",
                  f"v_pk_mul_f32 {vr(RT,2)}, {vr(RT,2)}, {vr(RT+4,2)} op_sel_hi:[1,0]",
                  f"v_pk_mul_f32 {vr(RT+2,2)}, {vr(RT+2,2)}, {vr(RT+4,2)} op_sel_hi:[1,0]"]
        else:
            for r in range(4): o.append(f"v_add_f32 v{RT+r}, v{RT+r}, v{RT+4+r}")
            for r in range(4): o.append(f"v_add_f32 v{RT+8+r}, v{RT+8+r}, v{RT+12+r}")
            for r in range(3): o.append(f"v_add_f32 v{RT+r}, v{RT+r}, v{RT+8+r}")
            o.append(f"v_rcp_f32_dpp v{RT+4}, v{RT} quad_perm:[3,3,3,3] row_mask:0xf bank_mask:0xf")
            o.append(f"v_add_f32 v{RT+3}, v{RT+3}, v{RT+11}")
            for r in range(4): o.append(f"v_mul_f32 v{RT+r}, v{RT+r}, v{RT+4}")
        return o + [f"v_cvt_pk_bf16_f32 v{RT}, v{RT}, v{RT+1}",
                    f"v_cvt_pk_bf16_f32 v{RT+1}, v{RT+2}, v{RT+3}",
                    f"v_subrev_u32 v{RT+4}, {R_LO}, v{RT+4}",
                    f"v_max_u32 v{vCHK}, v{vCHK}, v{RT+4}"]
    def owrite():
        e(f"ds_write2_b32 v{vOW}, v{RT}, v{RT+1} offset0:0 offset1:32")
        e(f"v_add_u32 v{vOW}, v{vOI}, v{vOW}")
    def publish(g):
        st['avail'] = (80*(g+1)//64)*10

    p.tag = 'p2first'
    if not slow: stamp(p, 1)
    zeroO(0)
    if slow: maxpass(0)
    X(0); M(0, 0); M(0, 1)
    for P in range(64):
        g, pp = divmod(P, 8)
        p.tag = f'p2_{g}_{pp}'
        c = SB[P % 2]
        if not slow and P in (8, 16, 32): stamp(p, {8: 2, 16: 3, 32: 4}[P])
        vq = []
        if g > 0 and pp == 2 and 'nored' not in EXP: vq = reduce_ops(False)
        kv = []
        if g == 0 and not slow:
            if pp + 3 < 8: kv += loadk(pp+3)
            if pp + 2 < 8: kv += loadv(pp+2)
        def E(a, b):
            for r in range(a, b): e(f"v_exp_f32 v{c+r}, v{c+r}")
        def kvload(n):
            while kv and n > 0:
                x = kv.pop(0); e(x)
                if x.startswith('buffer'): n -= 1
            while kv and kv[0].startswith('s_'): e(kv.pop(0))
        def mem(slotname, nxt=None):
            k = (pp, slotname)
            if nxt: p.prewait(nxt)
            if slotname in 'BE' and not (slotname == 'E' and pp == 1 and g < 7):
                x = next_sm16()
                if x: p.prewait(x)
            if slotname in 'AD': pre_so()
            if g > 0 and 'noex' in EXP:
                if k == (3, 'B'): publish(g-1)
            elif g > 0:
                if k == (0, 'B'): xwrite(g-1, 0)
                if k == (0, 'D'): xwrite(g-1, 1)
                if k == (0, 'E'): xwrite(g-1, 2)
                if k == (1, 'D'): p.barrier()
                if k == (1, 'E'):
                    for w2 in range(4): xread(w2)
                if k == (2, 'B') and vq: p.prewait(f"v_add_f32 v{RT+12}, v{RT+12}, v{RT+12}")
                if k == (2, 'E'): owrite()
                if k == (3, 'B'):
                    p.barrier(); publish(g-1)
            if k == (4, 'A') and g < 7: loadq(g+1)
            if slotname in 'AD': try_aload()
            if slotname in 'ABDE': kvload(2)
            if slotname in 'CF' and g > 0: try_wload()
            if slotname in 'ABDE' and (8*g + pp) in (6, 7, 8): try_wload()
            if g == 7 and slotname == 'A' and st['ldk'] < 100 and st['ldk'] - 92 <= pp:
                wload(st['ldk']); st['ldk'] += 1
            h = hooks.get((g, pp, slotname))
            if h: h()
        E(0, 2)
        if P > 0: SM(P-1, 3)
        mem('A', Xtext(P+1) if P < 63 else None)
        E(2, 5)
        if P < 63:
            if slow and pp == 7: maxpass(g+1)
            X(P+1)
        E(5, 13)
        SM(P, 0); mem('B')
        for x in vq[:8]: e(x)
        E(13, 16)
        try_sm16(); mem('C')
        E(16, 18)
        SM(P, 1); mem('D')
        for x in vq[8:]: e(x)
        E(18, 21)
        if P < 63: M(P+1, 0)
        E(21, 24)
        if P < 63: M(P+1, 1)
        E(24, 27)
        SM(P, 2); mem('E')
        E(27, 30)
        if pp == 1 and g < 7: zeroO(g+1)
        else: try_sm16()
        mem('F')
        E(30, 32)
        assert not kv
    p.tag = 'p2tail'
    if not slow: stamp(p, 5)
    SM(63, 3)
    while st['mm'] < 80:
        assert try_sm16(); try_wload()
    while try_wload(): pass
    for jq in range(3): xwrite(7, jq)
    p.barrier()
    for w2 in range(4): xread(w2)
    for x in reduce_ops(True): e(x)
    owrite()
    if not slow:
        e(f"v_cmp_lt_u32 vcc, {R_HI - R_LO}, v{vCHK}")
        e("s_cmp_lg_u64 vcc, 0")
        e("s_cselect_b32 s51, 1, 0")
        e(f"s_lshl_b32 s52, s{sW}, 2")
        e("v_mov_b32 v20, s52")
        e("v_mov_b32 v21, s51")
        e(f"ds_write_b32 v20, v21 offset:{L2_FL}")
    p.barrier(); publish(7)
    try_aload(); try_aload()
    if not slow:
        e(f"ds_read_b128 v[20:23], v{vZ} offset:{L2_FL}")
    while st['mm'] < 100:
        assert try_sm16(); try_wload()
    if not slow:
        e("v_or3_b32 v20, v20, v21, v22")
        e("v_or_b32 v20, v20, v23")
        e("v_readfirstlane_b32 s51, v20")

def p2_epilogue(p, sf=""):
    e = p.e
    p.tag = 'p2epi'
    stamp(p, 6)
    Hh = lambda t, r: PA + 8*t + r
    e("v_bfe_u32 v20, v0, 4, 1")
    e(f"s_mov_b32 s50, {HT - HTP}")
    e("v_mul_lo_u32 v20, v20, s50")
    e("v_lshrrev_b32 v21, 5, v0")
    e("v_lshl_add_u32 v20, v21, 8, v20")
    e("v_and_b32 v21, 15, v0")
    e("v_lshl_add_u32 v14, v21, 4, v20")
    e(f"s_mul_i32 s52, s{sW}, {5*131072}")
    e(f"s_lshl_b32 s50, s{sB}, 9")
    e("s_add_u32 s52, s52, s50")
    e(f"s_add_u32 s52, s52, {HTP}")
    e("v_bfe_u32 v20, v0, 2, 3")
    e("v_lshlrev_b32 v20, 6, v20")
    e("v_lshrrev_b32 v21, 5, v0")
    e(f"s_lshl_b32 s50, s{sW}, 4")
    e("v_lshl_add_u32 v21, v21, 3, s50")
    e("v_add_u32 v15, v20, v21")
    e("v_and_b32 v21, 3, v0")
    e("v_lshl_add_u32 v28, v21, 4, v20")
    for t in range(5):
        for r in range(4): e(f"v_permlane32_swap_b32 v{Hh(t,r)}, v{Hh(t,r)+4}")
        for r in (0, 2): e(f"v_pk_add_f32 {vr(Hh(t,r),2)}, {vr(Hh(t,r),2)}, {vr(Hh(t,r)+4,2)}")
    SU, SQ = 32, 36
    for r in (0, 2):
        e(f"v_pk_add_f32 {vr(SU+r,2)}, {vr(Hh(0,r),2)}, {vr(Hh(1,r),2)}")
        e(f"v_pk_mul_f32 {vr(SQ+r,2)}, {vr(Hh(0,r),2)}, {vr(Hh(0,r),2)}")
    for t in range(1, 5):
        for r in (0, 2):
            if t > 1: e(f"v_pk_add_f32 {vr(SU+r,2)}, {vr(SU+r,2)}, {vr(Hh(t,r),2)}")
            e(f"v_pk_fma_f32 {vr(SQ+r,2)}, {vr(Hh(t,r),2)}, {vr(Hh(t,r),2)}, {vr(SQ+r,2)}")
    def dpp(d, s, ctl, bm=0xf): e(f"v_add_f32_dpp v{d}, v{s}, v{s} {ctl} row_mask:0xf bank_mask:{hex(bm)}")
    for a in (SU, SU+1, SQ, SQ+1): dpp(a, a, "row_ror:8", 0x3)
    for a in (SU, SU+1, SQ, SQ+1): dpp(a, a+2, "row_ror:8", 0xc)
    O = 64
    cv = [f"v_cvt_pk_bf16_f32 v{O+4*t+2+r//2}, v{Hh(t,r)}, v{Hh(t,r)+1}" for t in range(5) for r in (0, 2)]
    dpp(40, SU, "row_half_mirror", 0x5); dpp(41, SQ, "row_half_mirror", 0x5)
    e(cv[0])
    dpp(40, SU+1, "row_half_mirror", 0xa); dpp(41, SQ+1, "row_half_mirror", 0xa)
    e(cv[1])
    dpp(40, 40, "quad_perm:[1,0,3,2]"); dpp(41, 41, "quad_perm:[1,0,3,2]")
    e(cv[2])
    dpp(40, 40, "quad_perm:[2,3,0,1]"); dpp(41, 41, "quad_perm:[2,3,0,1]")
    e(f"ds_write_b64 v15, v[40:41] offset:{L2_ST}")
    for x in cv[3:6]: e(x)
    p.barrier()
    e(f"ds_read_b128 v[40:43], v28 offset:{L2_ST}")
    for x in cv[6:]: e(x)
    e("v_pk_add_f32 v[40:41], v[40:41], v[42:43]")
    dpp(40, 40, "quad_perm:[1,0,3,2]"); dpp(41, 41, "quad_perm:[1,0,3,2]")
    dpp(40, 40, "quad_perm:[2,3,0,1]"); dpp(41, 41, "quad_perm:[2,3,0,1]")
    e(f"v_mul_f32 v40, {f32(-1.0/D)}, v40")
    e(f"v_mul_f32 v41, {f32(1.0/D)}, v41")
    e("v_fma_f32 v41, -v40, v40, v41")
    e("v_max_f32 v41, 0, v41")
    e(f"v_add_f32 v42, {f32(EPS)}, v41")
    e(f"v_fmac_f32 v41, {f32(EPS)}, v42")
    e("v_rsq_f32 v41, v41")
    e("v_mul_f32 v40, v40, v41")
    for r in range(4):
        e(f"v_mov_b32_dpp v{44+r}, v41 row_newbcast:{4*r} row_mask:0xf bank_mask:0xf")
    for r in range(4):
        e(f"v_mov_b32_dpp v{48+r}, v40 row_newbcast:{4*r} row_mask:0xf bank_mask:0xf")
    for t in range(5):
        for r in (0, 2):
            e(f"v_pk_fma_f32 {vr(Hh(t,r),2)}, {vr(Hh(t,r),2)}, {vr(44+r,2)}, {vr(48+r,2)}")
    for t in range(5):
        for r in (0, 2):
            e(f"v_cvt_pk_bf16_f32 v{O+4*t+r//2}, v{Hh(t,r)}, v{Hh(t,r)+1}")
    for t in range(5):
        for r in range(2): e(f"v_permlane16_swap_b32 v{O+4*t+r}, v{O+4*t+2+r}")
        tok = e(f"buffer_store_dwordx4 {vr(O+4*t,4)}, v14, s[16:19], s52 offen {sf}")
        if t < 4: e("s_add_u32 s52, s52, 131072")
    return tok
```

```python
from common import *
sW = 40
L_W = 32768
L_EX3 = 0
L_H4 = 24576
P34_LDS = 163840
sDB3, sFB3, sDB4, sSB4, sLW = 60, 61, 62, 63, 64
vL16 = 1
v3S, v3R = 17, (18, 19)

def p3_ids(p):
    e = p.e
    e("s_and_b32 s50, s2, 7")
    e("s_lshr_b32 s51, s2, 3")
    e("s_mul_i32 s52, s51, 52")
    e("s_lshr_b32 s52, s52, 8")
    e("s_mul_i32 s53, s52, 5")
    e(f"s_sub_u32 s{sDB3}, s51, s53")
    e("s_and_b32 s53, s50, 1")
    e("s_mul_i32 s53, s53, 5")
    e(f"s_add_u32 s{sDB3}, s{sDB3}, s53")
    e("s_lshr_b32 s53, s50, 1")
    e("s_mul_i32 s53, s53, 6")
    e(f"s_add_u32 s{sFB3}, s52, s53")
def p4_ids(p):
    e = p.e
    e("s_and_b32 s50, s2, 7")
    e("s_lshr_b32 s51, s2, 3")
    e("s_and_b32 s52, s50, 1")
    e("s_lshl_b32 s52, s52, 2")
    e("s_and_b32 s53, s51, 3")
    e(f"s_add_u32 s{sDB4}, s52, s53")
    e("s_lshr_b32 s52, s50, 1")
    e("s_lshl_b32 s52, s52, 3")
    e("s_lshr_b32 s53, s51, 2")
    e(f"s_add_u32 s{sSB4}, s52, s53")
assert all((i*52) >> 8 == i//5 for i in range(32))

def lw_base(p):
    p.e(f"s_lshl_b32 s{sLW}, s{sW}, 15")
    p.e(f"s_add_u32 s{sLW}, s{sLW}, {L_W}")

def p3_addr(p):
    e = p.e
    e("v_lshrrev_b32 v20, 5, v0")
    e("v_bfe_u32 v21, v0, 2, 2")
    e("v_lshl_add_u32 v20, v20, 2, v21")
    e("v_mul_u32_u24 v20, 3072, v20")
    e("v_bfe_u32 v21, v0, 4, 1")
    e("v_lshl_add_u32 v20, v21, 6, v20")
    e("v_and_b32 v21, 3, v0")
    e("v_lshl_add_u32 v20, v21, 4, v20")
    e(f"s_mul_i32 s50, s{sW}, {512*3072}")
    e(f"s_lshl_b32 s51, s{sFB3}, 7")
    e("s_add_u32 s50, s50, s51")
    e(f"v_add_u32 v{v3S}, s50, v20")
def p3_raddr(p):
    e = p.e
    e("v_lshrrev_b32 v20, 5, v0")
    e("v_lshlrev_b32 v20, 10, v20")
    e("v_bfe_u32 v21, v0, 2, 2")
    e("v_lshl_add_u32 v20, v21, 6, v20")
    e("v_bfe_u32 v21, v0, 4, 1")
    e("v_lshl_add_u32 v20, v21, 5, v20")
    e("v_and_b32 v21, 1, v0")
    e("v_lshl_add_u32 v20, v21, 4, v20")
    e("v_bfe_u32 v21, v0, 1, 1")
    e("v_lshl_add_u32 v20, v21, 3, v20")
    e(f"s_and_b32 s50, s{sW}, 1")
    e("s_lshl_b32 s50, s50, 5")
    e(f"s_lshr_b32 s51, s{sW}, 1")
    e("s_lshl_b32 s51, s51, 8")
    e("s_or_b32 s50, s50, s51")
    e(f"s_or_b32 s50, s50, s{sLW}")
    e(f"v_xor_b32 v{v3R[0]}, s50, v20")
    e(f"v_xor_b32 v{v3R[1]}, 256, v{v3R[0]}")
def p3_dma(p, q):
    p.e(f"s_add_u32 m0, s{sLW}, {(q % 32)*1024}")
    p.e(f"s_mov_b32 s65, {q*8*3072}")
    return p.e(f"buffer_load_dwordx4 v{v3S}, s[24:27], s65 offen lds")
def b3(step, ft): return (80 + 8*step + 4*ft) % 256
def p3_tr(step):
    return [f"ds_read_b64_tr_b16 {ar(b3(step,ft)+2*hh,2)}, v{v3R[ft]} offset:{(step%16)*2048 + hh*512}" for ft in range(2) for hh in range(2)]

def vop2(op, d, a, b, n, packed):
    if packed: return [f"v_pk_{op}_f32 {vr(d+r,2)}, {vr(a+r,2)}, {vr(b+r,2)}" for r in range(0, n, 2)]
    return [f"v_{op}_f32 v{d+r}, v{a+r}, v{b+r}" for r in range(n)]
def gelu_ops(b, t, packed):
    o = vop2('mul', t, b, b, 8, packed)
    if packed: o += [f"v_pk_fma_f32 {vr(t+r,2)}, {vr(t+r,2)}, s[66:67], v[22:23]" for r in range(0, 8, 2)]
    else: o += [f"v_fma_f32 v{t+r}, v{t+r}, s66, v22" for r in range(8)]
    o += vop2('mul', t, t, b, 8, packed)
    for r in range(8): o.append(f"v_exp_f32 v{t+r}, v{t+r}")
    if packed: o += [f"v_pk_add_f32 {vr(t+r,2)}, {vr(t+r,2)}, 1.0 op_sel_hi:[1,0]" for r in range(0, 8, 2)]
    else: o += [f"v_add_f32 v{t+r}, 1.0, v{t+r}" for r in range(8)]
    for r in range(8): o.append(f"v_rcp_f32 v{t+r}, v{t+r}")
    o += vop2('mul', b, t, b, 8, packed)
    for r in range(0, 8, 2): o.append(f"v_cvt_pk_bf16_f32 v{t+r//2}, v{b+r}, v{b+r+1}")
    return o

def p3_pre(p):
    e = p.e
    e("v_lshrrev_b32 v20, 5, v0")
    e("v_lshlrev_b32 v20, 4, v20")
    e(f"s_lshl_b32 s50, s{sFB3}, 7")
    e(f"s_lshl_b32 s51, s{sW}, 5")
    e("s_add_u32 s50, s50, s51")
    e("buffer_load_dwordx4 v[24:27], v20, s[32:35], s50 offen")
    c0 = -2.0 * LOG2E * (2.0/3.141592653589793) ** 0.5
    e(f"s_mov_b32 s66, {f32(c0*0.044715)}")
    e("s_mov_b32 s67, s66")
    e(f"v_mov_b32 v22, {f32(c0)}")
    e("v_mov_b32 v23, v22")
    e(f"s_mul_i32 s50, s{sW}, 6144")
    e(f"v_add_u32 v10, s50, v{vL16}")
    for sg in range(1, 4):
        e(f"s_xor_b32 s50, s{sW}, {sg}")
        e("s_mul_i32 s50, s50, 6144")
        e(f"v_add_u32 v{10+sg}, s50, v{vL16}")
    e("v_bfe_u32 v20, v0, 4, 1")
    e(f"v_mul_u32_u24 v20, {48*1024}, v20")
    e("v_lshrrev_b32 v21, 5, v0")
    e("v_lshl_add_u32 v20, v21, 8, v20")
    e("v_and_b32 v21, 15, v0")
    e("v_lshl_add_u32 v14, v21, 4, v20")
    e(f"s_mul_i32 s70, s{sDB3}, {4*48*1024}")
    e(f"s_lshl_b32 s50, s{sFB3}, 11")
    e("s_add_u32 s70, s70, s50")
    e(f"s_lshl_b32 s50, s{sW}, 9")
    e("s_add_u32 s70, s70, s50")
    e(f"s_add_u32 s70, s70, {GF}")
    for r in range(4):
        e(f"v_and_b32 v{3+2*r}, 0xffff0000, v{24+r}")
        e(f"v_lshlrev_b32 v{2+2*r}, 16, v{24+r}")

def p3_main(p, tok2, lf="", sf="", after_loads=None, sb=0):
    e = p.e
    p.tag = 'p3'
    stamp(p, sb+1)
    ACC = [32, 64]; RING = 128; NR = 32; T = 96
    e(f"s_lshl_b32 s71, s{sDB3}, 18")
    e(f"s_lshl_b32 s50, s{sW}, 15")
    e("s_add_u32 s71, s71, s50")
    e(f"s_add_u32 s71, s71, {HTP}")
    def hload(n):
        dt, st = divmod(n, 32)
        if n % 4 == 0: e(f"s_add_u32 s50, s71, {dt*131072 + st*1024}")
        e(f"buffer_load_dwordx4 {vr(RING+4*(n%NR),4)}, v{vL16}, s[16:19], s50 offen offset:{(n%4)*1024} {lf}")
    for n in range(NR): hload(n)
    def xw(dt): return [f"ds_write_b128 v10, {vr(ACC[dt]+8*sg+4*k,4)} offset:{L_EX3 + (sg-1)*2048 + k*1024}" for sg in range(1, 4) for k in range(2)]
    def xr(): return [f"ds_read_b128 {vr(T+8*(sg-1)+4*k,4)}, v{10+sg} offset:{L_EX3 + (sg-1)*2048 + k*1024}" for sg in range(1, 4) for k in range(2)]
    def fin(dt):
        a = ACC[dt]; pk = dt == 1
        o = vop2('add', a, a, 2, 8, pk) + vop2('add', a, a, T, 8, pk) + vop2('add', T+8, T+8, T+16, 8, pk) + vop2('add', a, a, T+8, 8, pk)
        o += gelu_ops(a, T+24, pk)
        if dt: o.append(f"s_add_u32 s70, s70, {2*48*1024}")
        o.append(f"buffer_store_dwordx4 {vr(T+24,4)}, v14, s[16:19], s70 offen {sf}")
        return o
    extra = []
    for n in range(64):
        dt, st = divmod(n, 32)
        if dt == 0 and 4 <= st < 20:
            p.wait_vm(tok2[2*(st-4)+1]); extra += p3_tr(st+12)
        if n == 1: stamp(p, sb+2)
        if n == 32: stamp(p, sb+3)
        if n == 36: extra += xw(0)
        if n == 42: extra += ['BAR'] + xr()
        if n == 45: extra += fin(0)
        if n == 62: extra += ['BAR']
        for ft in range(2):
            d = vr(ACC[dt]+16*ft, 16)
            e(f"v_mfma_f32_32x32x16_bf16 {d}, {ar(b3(st,ft),4)}, {vr(RING+4*(n%NR),4)}, {'0' if st == 0 else d}")
            if ft == 1 and n + NR < 64: hload(n + NR)
            if ft == 1 and n >= 32 and after_loads: after_loads(n - 32)
            budget = 20
            while extra and budget > 0:
                x = extra.pop(0)
                if x == 'BAR': p.barrier(); continue
                e(x)
                budget -= 20 if x.startswith('ds_write') else 8 if x.startswith(('v_exp', 'v_rcp')) else 4
    assert not extra
    p.tag = 'p3tail'
    stamp(p, sb+4)
    for x in xw(1): e(x)
    p.barrier()
    for x in xr() + fin(1): tok = e(x)
    return tok

v4S = 15; v4R = (28, 29, 30, 31)
def p4_addr(p):
    e = p.e
    e("v_bfe_u32 v20, v0, 4, 1")
    e("v_bfe_u32 v21, v0, 2, 2")
    e("v_lshl_add_u32 v21, v20, 3, v21")
    e("v_lshlrev_b32 v21, 12, v21")
    e("v_lshlrev_b32 v20, 1, v20")
    e("v_xor_b32 v20, v20, v0")
    e("v_and_b32 v20, 3, v20")
    e("v_lshl_add_u32 v21, v20, 4, v21")
    e("v_lshrrev_b32 v20, 5, v0")
    e("v_lshl_add_u32 v21, v20, 6, v21")
    e(f"s_mul_i32 s50, s{sW}, {384*4096}")
    e(f"s_lshl_b32 s51, s{sSB4}, 7")
    e("s_add_u32 s50, s50, s51")
    e(f"v_add_u32 v{v4S}, s50, v21")
def p4_raddr(p):
    e = p.e
    e("v_lshrrev_b32 v20, 5, v0")
    e("v_lshlrev_b32 v20, 11, v20")
    e("v_bfe_u32 v21, v0, 2, 3")
    e("v_lshl_add_u32 v20, v21, 6, v20")
    e("v_bfe_u32 v21, v0, 4, 1")
    e("v_lshl_add_u32 v20, v21, 5, v20")
    e("v_and_b32 v21, 3, v0")
    e("v_lshl_add_u32 v20, v21, 3, v20")
    e(f"s_and_b32 s50, s{sW}, 1")
    e("s_lshl_b32 s50, s50, 5")
    e(f"s_lshr_b32 s51, s{sW}, 1")
    e("s_lshl_b32 s51, s51, 9")
    e("s_or_b32 s50, s50, s51")
    e(f"s_or_b32 s50, s50, s{sLW}")
    e(f"v_xor_b32 v{v4R[0]}, s50, v20")
    for sg in range(1, 4):
        e(f"v_xor_b32 v{v4R[sg]}, {(sg&1)*32 + (sg>>1)*512}, v{v4R[0]}")
def p4_dma(p, q):
    st, a, hh = q // 4, (q // 2) % 2, q % 2
    p.e(f"s_add_u32 m0, s{sLW}, {(q % 32)*1024}")
    p.e(f"s_mov_b32 s65, {(32*st + 16*a + 4*hh)*4096}")
    return p.e(f"buffer_load_dwordx4 v{v4S}, s[28:31], s65 offen lds")
def p4_tr(step):
    return [f"ds_read_b64_tr_b16 {ar(16*step+4*sg+2*hh,2)}, v{v4R[sg]} offset:{(step%8)*4096 + hh*1024}" for sg in range(4) for hh in range(2)]
A4 = 32
def p4_hdma(p, lf=""):
    e = p.e
    e(f"s_lshl_b32 s50, s{sSB4}, 3")
    e(f"s_lshl_b32 s51, s{sW}, 1")
    e("s_add_u32 s50, s50, s51")
    e("s_lshl_b32 s52, s50, 4")
    e("s_lshl_b32 s50, s50, 9")
    e(f"s_add_u32 s50, s50, {HT}")
    e(f"s_mul_i32 s51, s{sDB4}, 80")
    tok = None
    for q in range(3):
        e("v_lshrrev_b32 v20, 1, v0")
        e(f"v_add3_u32 v20, v20, s51, {32*q}")
        e("v_lshrrev_b32 v21, 5, v20")
        e("v_lshlrev_b32 v21, 17, v21")
        e("v_and_b32 v20, 31, v20")
        e("v_lshl_add_u32 v21, v20, 4, v21")
        e("v_and_b32 v20, 1, v0")
        e("v_lshl_add_u32 v21, v20, 9, v21")
        e(f"s_add_u32 m0, s{sLW}, {L_H4 + 1024*q}")
        tok = e(f"buffer_load_dwordx4 v21, s[16:19], s50 offen {lf} lds")
    e("v_and_b32 v20, 15, v0")
    e("v_lshlrev_b32 v20, 1, v20")
    e("buffer_load_ushort v22, v20, s[36:39], s52 offen")
    return tok
def p4_pre(p, htok):
    e = p.e
    e(f"v_lshl_add_u32 v20, v0, 3, s{sLW}")
    p.wait_vm(htok)
    for t in range(5): e(f"ds_read_b64_tr_b16 {vr(112+2*t,2)}, v20 offset:{L_H4 + 512*t}")
    e("v_lshrrev_b32 v20, 5, v0")
    e("v_lshl_add_u32 v20, v20, 2, v0")
    e("v_and_b32 v21, 48, v0")
    e("v_and_or_b32 v23, v20, 15, v21")
    e(f"v_lshl_add_u32 v2, v23, 4, s{sLW}")
    e("v_xor_b32 v3, 128, v2")
    e("v_lshrrev_b32 v20, 4, v0")
    e("v_lshl_add_u32 v20, v20, 2, v0")
    e("v_and_or_b32 v23, v20, 15, v21")
    e(f"v_lshl_add_u32 v4, v23, 4, s{sLW}")
    e("v_lshrrev_b32 v20, 2, v0")
    e("v_lshl_add_u32 v20, v0, 2, v20")
    e("v_and_b32 v20, 15, v20")
    e("v_lshlrev_b32 v20, 4, v20")
    e("v_and_b32 v21, 3, v0")
    e("v_lshl_add_u32 v24, v21, 8, v20")
    e("v_and_b32 v21, 1, v0")
    e("v_lshl_add_u32 v20, v21, 9, v20")
    e("v_bfe_u32 v21, v0, 1, 1")
    e("v_lshl_add_u32 v20, v21, 12, v20")
    for sg in range(4):
        e(f"s_xor_b32 s50, s{sW}, {sg}")
        e("s_lshl_b32 s50, s50, 15")
        e(f"s_add_u32 s50, s50, {L_W + sg*1024}")
        e(f"v_add_u32 v{5+sg}, s50, v20")
        e(f"v_add_u32 v{9+sg}, s50, v24")
    e("v_lshrrev_b32 v20, 2, v0")
    e("v_mul_u32_u24 v20, 1280, v20")
    e("v_and_b32 v21, 3, v0")
    e("v_lshl_add_u32 v13, v21, 4, v20")
    e("v_lshl_add_u32 v14, v21, 3, v20")
    e(f"s_lshl_b32 s70, s{sSB4}, 2")
    e(f"s_add_u32 s70, s70, s{sW}")
    e("s_mul_i32 s70, s70, 20480")
    e(f"s_mul_i32 s50, s{sDB4}, 160")
    e("s_add_u32 s70, s70, s50")
    e("v_lshlrev_b32 v22, 16, v22")
    for t in range(5):
        a = A4 + 16*t
        for r in range(2):
            e(f"v_lshlrev_b32 v{a+2*r}, 16, v{112+2*t+r}")
            e(f"v_and_b32 v{a+2*r+1}, 0xffff0000, v{112+2*t+r}")
        for r in range(2):
            e(f"v_pk_add_f32 {vr(a+2*r,2)}, {vr(a+2*r,2)}, v[22:23] op_sel_hi:[1,0]")

def p4_main(p, tok2, lf="", sb=0):
    e = p.e
    p.tag = 'p4'
    stamp(p, sb+1)
    RING = 128; NR = 32
    e(f"s_mul_i32 s71, s{sDB4}, {5*48*1024}")
    e(f"s_mul_i32 s50, s{sW}, 12288")
    e("s_add_u32 s71, s71, s50")
    e(f"s_add_u32 s71, s71, {GF}")
    def gload(n):
        t, st = divmod(n, 12)
        if n % 4 == 0: e(f"s_add_u32 s50, s71, {t*48*1024 + st*1024}")
        e(f"buffer_load_dwordx4 {vr(RING+4*(n%NR),4)}, v{vL16}, s[16:19], s50 offen offset:{(n%4)*1024} {lf}")
    for n in range(NR): gload(n)
    def xw(t): return [f"ds_write_b128 v{4 if t == 4 else 2 + t%2}, {vr(A4+16*t+4*sg,4)} offset:{t*4096 + sg*1024}" for sg in range(4)]
    def fin(pi):
        a = A4 + 32*pi; o = ['BAR']
        if pi < 2:
            for sg in range(4):
                for k in range(2): o.append(f"ds_read_b128 {vr(a+8*sg+4*k,4)}, v{5+sg} offset:{pi*8192 + k*256}")
            n = 8
        else:
            for sg in range(4): o.append(f"ds_read_b128 {vr(a+4*sg,4)}, v{9+sg} offset:16384")
            n = 4
        o.append('GAP')
        pk = pi == 2
        o += vop2('add', a, a, a+n, n, pk) + vop2('add', a+2*n, a+2*n, a+3*n, n, pk) + vop2('add', a, a, a+2*n, n, pk)
        for r in range(0, n, 2): o.append(f"v_cvt_pk_bf16_f32 v{a+n+r//2}, v{a+r}, v{a+r+1}")
        if pi < 2: o.append(f"buffer_store_dwordx4 {vr(a+n,4)}, v13, s[72:75], s70 offen offset:{64*pi}")
        else: o.append(f"buffer_store_dwordx2 {vr(a+n,2)}, v14, s[72:75], s70 offen offset:128")
        return o
    extra = []; hold = 0
    for n in range(60):
        t, st = divmod(n, 12)
        if t == 0 and 2 <= st < 6:
            p.wait_vm(tok2[4*(st-2)+3]); extra += p4_tr(st+6)
        if n == 1: stamp(p, sb+2)
        if n == 24: stamp(p, sb+3)
        if t > 0 and st == 1: extra += xw(t-1)
        if t in (2, 4) and st == 4: extra += fin(t//2 - 1)
        for sg in range(4):
            d = vr(A4+16*t+4*sg, 4)
            c = '0' if (st == 0 and sg > 0) else d
            e(f"v_mfma_f32_16x16x32_bf16 {d}, {vr(RING+4*(n%NR),4)}, {ar(16*st+4*sg,4)}, {c}")
            if sg == 3 and n + NR < 60: gload(n + NR); continue
            if hold > 0: hold -= 1; continue
            budget = 8
            while extra and budget > 0:
                x = extra.pop(0)
                if x == 'BAR': p.barrier(); continue
                if x == 'GAP': hold = 4; break
                e(x)
                if x.startswith('ds_write'): hold = 1
                budget -= 20 if x.startswith('ds_write') else 4
    p.tag = 'p4tail'
    stamp(p, sb+4)
    for x in extra + xw(4) + fin(2):
        if x == 'BAR': p.barrier()
        elif x != 'GAP': e(x)
```

```python
import sys
sys.path.insert(0, 'gen')
from common import *
import k1, p2, p34, merged
NAME = "sequential_preLN__grouped_kv_mqa__mixer_token_mlp__prompt"
def build(verbose=False):
    ref = open(f"cdna_kernels/{NAME}.s.ref").read().split('\n')
    head = [l for l in ref if l.startswith(';') and '@launch' not in l and 'Override launch' not in l and 'Harness parses' not in l]
    ks = [("qkv_kernel", k1.gen_k1, 256, k1.K1_LDS, 256, 256), ("main_kernel", merged.gen_main, 256, 163840, 512, 256)]
    out = '\n'.join(head) + '\n'
    for n, g, grid, lds, nv, acc in ks:
        out += f"; @launch kernel={n} grid=({grid},1,1) block=(256,1,1) lds={lds}\n"
    out += '.amdgcn_target "amdgcn-amd-amdhsa--gfx950"\n.text\n'
    for n, g, grid, lds, nv, acc in ks:
        p = Prog(); g(p, f"L_end_{n}")
        out += kernel_head(n) + p.text() + f"L_end_{n}:\n    s_endpgm\n"
        if verbose:
            print(n, p.ninstr)
            for x in p.nops:
                if not x[2].endswith('lds'): print('   ', x)
    out += '.section .rodata,"a"\n'
    for n, g, grid, lds, nv, acc in ks:
        out += ".p2align 6\n" + kernel_desc(n, nv, acc)
    return out
if __name__ == "__main__":
    dst = sys.argv[1] if len(sys.argv) > 1 else f"cdna_kernels/{NAME}.s"
    import common
    common.STAMP = 'stamp' in sys.argv[2:]
    merged.OPT.update(a[2:] for a in sys.argv[2:] if a.startswith('o:'))
    p2.EXP.update(a[2:] for a in sys.argv[2:] if a.startswith('x:'))
    open(dst, 'w').write(build(verbose='v' in sys.argv[2:]))
```
